```python
import torch

def _softmax(x, axis=-1):
    return torch.softmax(x, dim=axis)

def _gelu(x):
    return torch.nn.functional.gelu(x, approximate='tanh')

def _silu(x):
    return torch.nn.functional.silu(x)

def _sigmoid(x):
    return torch.sigmoid(x)

def _layernorm(x, axis=-1, eps=1e-05):
    m = x.mean(dim=axis, keepdim=True)
    v = x.var(dim=axis, keepdim=True, unbiased=False)
    return (x - m) / torch.sqrt(v + eps)

def _scatter_add(tgt, idx, src, axis=0):
    return tgt.clone().index_add_(axis, idx, src)

def _segment_sum(src, seg, n):
    out = torch.zeros((n,) + src.shape[1:], dtype=src.dtype)
    return out.index_add_(0, seg, src)

def _pad(x, pw):
    flat = tuple((v for pair in reversed(pw) for v in pair))
    return torch.nn.functional.pad(x, flat)
kernel_name = 'adaLN_cond__linear_kernel_hedgehog__dense_activation_squared_relu__prompt'

def setup_inputs():

    _w = lambda a: (lambda t: t.to(torch.bfloat16) if t.is_floating_point() else t)(torch.as_tensor(a))

    def _A_setup():
        B, S, D, H = (1, 2048, 640, 32)
        Dh = D // H
        return {'x': _w((lambda *s: torch.randn(*s, dtype=torch.bfloat16) * 0.05)(B, S, D)), 'wqkv': _w((lambda *s: torch.randn(*s, dtype=torch.bfloat16) * 0.4)(D, 3 * D)), 'w_phi': _w((lambda *s: torch.randn(*s, dtype=torch.bfloat16) * 0.4)(H, Dh, Dh) * Dh ** (-0.5)), 'wo': _w((lambda *s: torch.randn(*s, dtype=torch.bfloat16) * 0.05)(D, D))}
    _A_in = _A_setup()

    def _B_setup():
        B, S, D, F = (1, 2048, 640, 1728)
        return {'x': _w((lambda *s: torch.randn(*s, dtype=torch.bfloat16) * 0.05)(B, S, D)), 'w1': _w((lambda *s: torch.randn(*s, dtype=torch.bfloat16) * 0.05)(D, F)), 'b1': _w((lambda *s: torch.randn(*s, dtype=torch.bfloat16) * 0.4)(F)), 'w2': _w((lambda *s: torch.randn(*s, dtype=torch.bfloat16) * 0.05)(F, D)), 'b2': _w((lambda *s: torch.randn(*s, dtype=torch.bfloat16) * 1.6)(D))}
    _B_in = _B_setup()
    return {'A_x': _A_in['x'], 'A_wqkv': _A_in['wqkv'], 'A_w_phi': _A_in['w_phi'], 'A_wo': _A_in['wo'], 'B_x': _B_in['x'], 'B_w1': _B_in['w1'], 'B_b1': _B_in['b1'], 'B_w2': _B_in['w2'], 'B_b2': _B_in['b2'], 'c': _w((lambda *s: torch.randn(*s, dtype=torch.bfloat16) * 0.1)(1, 640) * 8.0), 'w_mod': _w((lambda *s: torch.randn(*s, dtype=torch.bfloat16) * 0.1)(640, 6 * 640) * 640 ** (-0.5) * 8.0)}

def reference(A_x, A_wqkv, A_w_phi, A_wo, B_x, B_w1, B_b1, B_w2, B_b2, c, w_mod):

    def _A_ref(x, wqkv, w_phi, wo):
        B, S, D = x.shape
        H = 32
        Dh = D // H
        qkv = (lambda x, *d: x.permute(*d))((x @ wqkv).reshape(B, S, 3, H, Dh), 2, 0, 3, 1, 4)
        q, k, v = (qkv[0], qkv[1], qkv[2])
        pq = torch.einsum('bhsd,hdf->bhsf', q, w_phi)
        pk = torch.einsum('bhsd,hdf->bhsf', k, w_phi)
        phi_q = torch.concatenate([_softmax(pq, axis=-1), _softmax(-pq, axis=-1)], axis=-1)
        phi_k = torch.concatenate([_softmax(pk, axis=-1), _softmax(-pk, axis=-1)], axis=-1)
        kv = torch.einsum('bhsf,bhsd->bhfd', phi_k, v)
        z = torch.einsum('bhsf->bhf', phi_k)
        num = torch.einsum('bhqf,bhfd->bhqd', phi_q, kv)
        den = torch.einsum('bhqf,bhf->bhq', phi_q, z)[..., None] + 1e-06
        o = num / den
        return (lambda x, *d: x.permute(*d))(o, 0, 2, 1, 3).reshape(B, S, D) @ wo

    def _B_ref(x, w1, b1, w2, b2):
        h = torch.einsum('bsd,df->bsf', x, w1) + b1
        zero = torch.zeros_like(h)
        r = torch.where(h > zero, h, zero)
        h = r * r
        out = torch.einsum('bsf,fd->bsd', h, w2) + b2
        return out
    x = A_x
    mod = (_silu(c) @ w_mod).reshape(c.shape[0], 6, 1, -1)
    sa, ca, ga, sb, cb, gb = (mod[:, 0].clone(), mod[:, 1].clone(), mod[:, 2].clone(), mod[:, 3].clone(), mod[:, 4].clone(), mod[:, 5].clone())
    h = _layernorm(x, axis=-1) * (1 + ca) + sa
    x = x + ga * _A_ref(h, A_wqkv, A_w_phi, A_wo)
    h = _layernorm(x, axis=-1) * (1 + cb) + sb
    x = x + gb * _B_ref(h, B_w1, B_b1, B_w2, B_b2)
    return x
```

```python
class Asm:
    def __init__(self):
        self.L = []
        self._uid = 0
    def __call__(self, s):
        for line in s.split("\n"):
            self.L.append("  " + line.strip())
    def label(self, name):
        self.L.append(name + ":")
    def raw(self, s):
        self.L.append(s)
    def comment(self, s):
        self.L.append("  ; " + s)
    def uid(self, prefix):
        self._uid += 1
        return f"{prefix}_{self._uid}"
    def text(self):
        return "\n".join(self.L)

def v(i, n=1): return f"v{i}" if n == 1 else f"v[{i}:{i+n-1}]"
def a(i, n=1): return f"a{i}" if n == 1 else f"a[{i}:{i+n-1}]"
def s(i, n=1): return f"s{i}" if n == 1 else f"s[{i}:{i+n-1}]"

def srd(A, dst, base_lo, off, nbytes):
    if off:
        A(f"s_add_u32 s{dst}, s{base_lo}, {hex(off)}")
        A(f"s_addc_u32 s{dst+1}, s{base_lo+1}, 0")
    else:
        A(f"s_mov_b32 s{dst}, s{base_lo}")
        A(f"s_mov_b32 s{dst+1}, s{base_lo+1}")
    A(f"s_mov_b32 s{dst+2}, {hex(nbytes)}")
    A(f"s_mov_b32 s{dst+3}, 0x00020000")

def magic(d, maxn):
    for sh in range(0, 32):
        M = -(-(1 << sh) // d)
        if M >= (1 << 24) or M * maxn >= (1 << 32): continue
        if all((n * M) >> sh == n // d for n in range(maxn + 1)): return M, sh
    raise ValueError((d, maxn))

def vdiv(A, dst, src, d, maxn, tmp_s):
    M, sh = magic(d, maxn)
    A(f"s_mov_b32 s{tmp_s}, {M}")
    A(f"v_mul_u32_u24 v{dst}, s{tmp_s}, v{src}")
    A(f"v_lshrrev_b32 v{dst}, {sh}, v{dst}")

def sdiv(A, dst, src, d, maxn):
    M, sh = magic(d, maxn)
    A(f"s_mul_i32 s{dst}, s{src}, {M}")
    A(f"s_lshr_b32 s{dst}, s{dst}, {sh}")

def kernel_header(name):
    return f".globl {name}\n.p2align 8\n.type {name},@function\n{name}:"

def kernel_desc(name, nvgpr, nagpr, nsgpr):
    acc = ((nvgpr + 3) // 4) * 4
    tot = acc + nagpr if nagpr else nvgpr
    return f""".p2align 6
.amdhsa_kernel {name}
  .amdhsa_next_free_vgpr {tot}
  .amdhsa_next_free_sgpr {nsgpr}
  .amdhsa_accum_offset {acc}
  .amdhsa_group_segment_fixed_size 0
  .amdhsa_kernarg_size 112
  .amdhsa_user_sgpr_count 2
  .amdhsa_user_sgpr_kernarg_segment_ptr 1
  .amdhsa_system_sgpr_workgroup_id_x 1
  .amdhsa_float_denorm_mode_32 3
.end_amdhsa_kernel
"""
```

```python
from asm import *
from layout import *

SPIN_LIMIT = 1 << 20

def interleave(main, fill, per):
    out = []; fi = 0
    def cost(x): return 2 if x.split()[0] in ("v_exp_f32", "v_rcp_f32", "v_rsq_f32") else 1
    for mi, (ins, budget) in enumerate(main):
        out.append(ins)
        b = per if budget is None else budget
        while fi < len(fill) and b > 0:
            out.append(fill[fi]); b -= cost(fill[fi]); fi += 1
    out.extend(fill[fi:])
    return out

def dpp_allreduce16(A, reg, op="v_add_f32"):
    for pat in ["quad_perm:[1,0,3,2]", "quad_perm:[2,3,0,1]", "row_half_mirror", "row_mirror"]:
        A("s_nop 1")
        A(f"{op}_dpp v{reg}, v{reg}, v{reg} {pat} row_mask:0xf bank_mask:0xf")

def softmax_pm(src, ep, dst, t):
    L = []
    mx, mn, zp, zn = t, t + 2, t + 4, t + 6
    L.append(f"v_max3_f32 v{mx}, v{src}, v{src+1}, v{src+2}")
    L.append(f"v_min3_f32 v{mn}, v{src}, v{src+1}, v{src+2}")
    for k in range(3, 19, 2):
        L.append(f"v_max3_f32 v{mx}, v{mx}, v{src+k}, v{src+k+1}")
        L.append(f"v_min3_f32 v{mn}, v{mn}, v{src+k}, v{src+k+1}")
    L.append(f"v_max_f32 v{mx}, v{mx}, v{src+19}")
    L.append(f"v_min_f32 v{mn}, v{mn}, v{src+19}")
    for k in range(0, 20, 2):
        L.append(f"v_pk_add_f32 {v(ep+k,2)}, {v(src+k,2)}, {v(mx,2)} op_sel_hi:[1,0] neg_lo:[0,1] neg_hi:[0,1]")
        L.append(f"v_pk_add_f32 {v(ep+20+k,2)}, {v(src+k,2)}, {v(mn,2)} op_sel_hi:[1,0] neg_lo:[1,0] neg_hi:[1,0]")
    for k in range(40):
        L.append(f"v_exp_f32 v{ep+k}, v{ep+k}")
    L.append(f"v_pk_add_f32 {v(zp,2)}, {v(ep,2)}, {v(ep+2,2)}")
    L.append(f"v_pk_add_f32 {v(zn,2)}, {v(ep+20,2)}, {v(ep+22,2)}")
    for k in range(4, 20, 2):
        L.append(f"v_pk_add_f32 {v(zp,2)}, {v(zp,2)}, {v(ep+k,2)}")
        L.append(f"v_pk_add_f32 {v(zn,2)}, {v(zn,2)}, {v(ep+20+k,2)}")
    L.append(f"v_add_f32 v{zp}, v{zp}, v{zp+1}")
    L.append(f"v_add_f32 v{zn}, v{zn}, v{zn+1}")
    L.append(f"v_rcp_f32 v{zp}, v{zp}")
    L.append(f"v_rcp_f32 v{zn}, v{zn}")
    L.append("s_nop 0")
    for k in range(0, 20, 2):
        L.append(f"v_pk_mul_f32 {v(ep+k,2)}, {v(ep+k,2)}, {v(zp,2)} op_sel_hi:[1,0]")
        L.append(f"v_pk_mul_f32 {v(ep+20+k,2)}, {v(ep+20+k,2)}, {v(zn,2)} op_sel_hi:[1,0]")
    for k in range(20):
        L.append(f"v_cvt_pk_bf16_f32 v{dst+k}, v{ep+2*k}, v{ep+2*k+1}")
    return L

def poll_equal(A, tag, load, vreg, s_val, s_cnt):
    lab = A.uid("L_poll_" + tag); done = lab + "_done"
    A(f"s_mov_b32 s{s_cnt}, 0")
    A.label(lab)
    load()
    A("s_waitcnt vmcnt(0)")
    A(f"v_cmp_ne_u32 vcc, s{s_val}, v{vreg}")
    A(f"s_add_u32 s{s_cnt}, s{s_cnt}, 1")
    A(f"s_cmp_gt_u32 s{s_cnt}, {SPIN_LIMIT}")
    A(f"s_cbranch_scc1 {done}")
    A("s_cmp_lg_u64 vcc, 0")
    A(f"s_cbranch_scc1 {lab}")
    A.label(done)

def publish_flag(A, tag, srd_fl, v_off, v_val, s_mode):
    slow = A.uid("L_slow_" + tag); done = slow + "_d"
    A("s_mov_b64 s[40:41], exec")
    A("s_mov_b64 exec, 1")
    A(f"s_cmp_eq_u32 s{s_mode}, 0")
    A(f"s_cbranch_scc1 {slow}")
    A(f"buffer_store_dword v{v_val}, v{v_off}, s[{srd_fl}:{srd_fl+3}], 0 offen")
    A(f"s_branch {done}")
    A.label(slow)
    A("buffer_wbl2 sc1")
    A("s_waitcnt vmcnt(0)")
    A(f"buffer_store_dword v{v_val}, v{v_off}, s[{srd_fl}:{srd_fl+3}], 0 offen sc1")
    A.label(done)
    A("s_mov_b64 exec, s[40:41]")

class Cnt:
    def __init__(self, A, name, cap):
        self.A, self.name, self.cap = A, name, cap
        self.ops = []
    def issue(self, ins, tag=None):
        self.A(ins)
        self.ops.append(tag)
    def pending(self, tag):
        idx = max(i for i, t in enumerate(self.ops) if t == tag)
        return len(self.ops) - 1 - idx
    def wait(self, tag):
        if tag not in self.ops: return
        n = min(self.pending(tag), self.cap)
        self.A(f"s_waitcnt {self.name}({n})")
        idx = max(i for i, t in enumerate(self.ops) if t == tag)
        if self.pending(tag) <= self.cap: self.ops = self.ops[idx + 1:]
    def drain(self):
        self.A(f"s_waitcnt {self.name}(0)")
        self.ops = []
    def reset(self):
        self.ops = []

def xrow_allreduce(A, reg, tmp):
    A(f"v_mov_b32 v{tmp}, v{reg}")
    A("s_nop 1")
    A(f"v_permlane16_swap_b32 v{reg}, v{tmp}")
    A(f"v_add_f32 v{reg}, v{reg}, v{tmp}")
    A(f"v_mov_b32 v{tmp}, v{reg}")
    A("s_nop 1")
    A(f"v_permlane32_swap_b32 v{reg}, v{tmp}")
    A(f"v_add_f32 v{reg}, v{reg}, v{tmp}")

import os
STAMPS = int(os.environ.get("STAMPS", "0"))
DBG_OFF = 0x4000000
S_ST0 = 80
SKIP = os.environ.get("SKIP", "").split(",")
class Stamper:
    def __init__(self, A, kidx, s_ws, s_wave_expr):
        self.A, self.k, self.n, self.names = A, kidx, 0, []
        self.s_ws, self.s_wave = s_ws, s_wave_expr
    def __call__(self, name):
        if not STAMPS or name in SKIP: return
        assert self.n < 11, name
        op = "s_memtime" if STAMPS == 2 else "s_memrealtime"
        self.A(f"{op} s[{S_ST0+2*self.n}:{S_ST0+2*self.n+1}]")
        self.names.append(name); self.n += 1
    def flush(self):
        if not STAMPS: return
        A = self.A
        self("end")
        A("s_waitcnt lgkmcnt(0)")
        A("s_mov_b64 exec, 1")
        A(f"s_lshl_b32 s33, s2, 2")
        A(f"s_add_u32 s33, s33, s{self.s_wave}")
        A("s_lshl_b32 s33, s33, 7")
        A(f"s_add_u32 s33, s33, {DBG_OFF + self.k * 0x100000}")
        A("v_mov_b32 v4, s33")
        for i in range(self.n):
            A(f"v_mov_b32 v6, s{S_ST0+2*i}")
            A(f"v_mov_b32 v7, s{S_ST0+2*i+1}")
            A(f"global_store_dwordx2 v4, v[6:7], s[{self.s_ws}:{self.s_ws+1}] offset:{8*i}")
            A("s_nop 1")
        import json
        json.dump(self.names, open(f"stamps_{self.k}.json", "w"))

def code_prefetch(A, tag, start_label, end_label, s_piece, v_lane16, s_tmp, v_dst):
    pc = A.uid("L_pc_" + tag)
    A(f"s_getpc_b64 s[{s_tmp}:{s_tmp+1}]")
    A.label(pc)
    A(f"s_add_u32 s{s_tmp}, s{s_tmp}, {start_label}-{pc}")
    A(f"s_addc_u32 s{s_tmp+1}, s{s_tmp+1}, ({start_label}-{pc})>>32")
    A(f"s_lshl_b32 s{s_tmp+2}, s{s_piece}, 10")
    A(f"v_add_u32 v{v_dst}, s{s_tmp+2}, v{v_lane16}")
    A(f"v_min_u32 v{v_dst}, {end_label}-{start_label}-16, v{v_dst}")
    A(f"global_load_dwordx4 v[{v_dst}:{v_dst+3}], v{v_dst}, s[{s_tmp}:{s_tmp+1}]")

def weave(main, extra):
    k = 0
    for i, f in enumerate(main):
        f()
        tgt = (i + 1) * len(extra) // len(main)
        while k < tgt:
            extra[k](); k += 1
```

```python
from asm import *
from layout import *
from common import Stamper, STAMPS, code_prefetch

N_T1, N_T2, N_T3, N_T4, N_T5 = 60, 120, 25, 68, 68
B_T2 = N_T1
B_T3 = B_T2 + N_T2
B_T4 = B_T3 + N_T3
B_T5 = B_T4 + N_T4
K0_WGS = B_T5 + N_T5
K0_LDS = 32768
LOG2E = 0x3FB8AA3B

def t1(A):
    A(f"s_load_dwordx2 s[6:7], s[0:1], {KA_C}")
    A(f"s_load_dwordx2 s[8:9], s[0:1], {KA_WMOD}")
    A("v_lshrrev_b32 v1, 6, v0")
    A("v_and_b32 v2, 63, v0")
    A("v_lshrrev_b32 v3, 3, v2")
    A("v_and_b32 v4, 7, v2")
    A("v_mul_u32_u24 v5, 160, v1")
    A("v_add_u32 v5, v5, v3")
    A("s_mov_b32 s20, 7680")
    A("v_mul_u32_u24 v6, s20, v5")
    A("v_lshl_add_u32 v6, v4, 4, v6")
    A("s_lshl_b32 s21, s2, 7")
    A("v_add_u32 v6, s21, v6")
    A("v_lshlrev_b32 v7, 1, v5")
    A("s_waitcnt lgkmcnt(0)")
    srd(A, 12, 6, 0, 1280)
    srd(A, 16, 8, 0, 640 * 7680)
    CW, WW = 16, 40
    for it in range(20):
        A(f"buffer_load_ushort v{CW+it}, v7, s[12:15], 0 offen offset:{16*it}")
    A("s_mov_b32 s22, 0")
    for it in range(20):
        A(f"buffer_load_dwordx4 {v(WW+4*it,4)}, v6, s[16:19], s22 offen")
        if it < 19: A("s_add_u32 s22, s22, 61440")
    for e in range(8): A(f"v_mov_b32 v{8+e}, 0")
    A("s_waitcnt vmcnt(20)")
    for it in range(20):
        c = CW + it
        A(f"v_lshlrev_b32 v{c}, 16, v{c}")
        A(f"v_mul_f32 v36, 0xbfb8aa3b, v{c}")
        A("v_exp_f32 v36, v36")
        A("s_nop 0")
        A("v_add_f32 v36, 1.0, v36")
        A("v_rcp_f32 v36, v36")
        A("s_nop 0")
        A(f"v_mul_f32 v36, v{c}, v36")
        A(f"v_cvt_pk_bf16_f32 v{c}, v36, 0")
    for it in range(20):
        A(f"s_waitcnt vmcnt({19-it})")
        A(f"v_lshlrev_b32 v37, 16, v{CW+it}")
        for p in range(4):
            A(f"v_dot2_f32_bf16 v{8+2*p}, v{WW+4*it+p}, v{CW+it}, v{8+2*p}")
            A(f"v_dot2_f32_bf16 v{9+2*p}, v{WW+4*it+p}, v37, v{9+2*p}")
    A("v_lshl_add_u32 v5, v1, 3, v3")
    A("v_lshlrev_b32 v5, 8, v5")
    A("v_lshl_add_u32 v5, v4, 5, v5")
    A("s_nop 2")
    A("ds_write_b128 v5, v[8:11]")
    A("ds_write_b128 v5, v[12:15] offset:16")
    A("s_waitcnt lgkmcnt(0)")
    A("s_barrier")
    A("v_cmp_gt_u32 vcc, 64, v0")
    A("s_and_saveexec_b64 s[24:25], vcc")
    A("s_cbranch_execz L_k0_end")
    A("v_lshlrev_b32 v5, 2, v0")
    for q in range(32):
        A(f"ds_read_b32 v{40+q}, v5 offset:{256*q}")
    for q in range(32):
        if q % 8 == 0: A(f"s_waitcnt lgkmcnt({min(15, 31 - q - 7)})" if q < 24 else "s_waitcnt lgkmcnt(0)")
        if q == 0: continue
        A(f"v_add_f32 v40, v40, v{40+q}")
    A("v_cvt_pk_bf16_f32 v41, v40, 0")
    sdiv(A, 26, 2, 10, 63)
    A("s_cmp_eq_u32 s26, 1")
    A("s_cselect_b32 s27, 1, 0")
    A("s_cmp_eq_u32 s26, 4")
    A("s_cselect_b32 s27, 1, s27")
    A("s_cmp_eq_u32 s27, 0")
    A("s_cbranch_scc1 L_t1_store")
    A("v_lshlrev_b32 v41, 16, v41")
    A("v_add_f32 v41, 1.0, v41")
    A("v_cvt_pk_bf16_f32 v41, v41, 0")
    A.label("L_t1_store")
    A("v_lshlrev_b32 v5, 1, v0")
    A("v_add_u32 v5, s21, v5")
    srd(A, 12, 4, MODV, 7680)
    A("buffer_store_short v41, v5, s[12:15], 0 offen")
    A("s_branch L_k0_end")

def t2(A):
    A(f"s_load_dwordx2 s[6:7], s[0:1], {KA_WQKV}")
    A(f"s_load_dwordx2 s[8:9], s[0:1], {KA_WPHI}")
    A(f"s_sub_u32 s20, s2, {B_T2}")
    sdiv(A, 21, 20, 20, 127)
    A("s_mul_i32 s22, s21, 20")
    A("s_sub_u32 s22, s20, s22")
    sdiv(A, 23, 21, 3, 7)
    A("s_mul_i32 s24, s23, 3")
    A("s_sub_u32 s24, s21, s24")
    A("s_mul_i32 s25, s24, 20")
    A("s_add_u32 s26, s24, 1")
    A("s_cmp_eq_u32 s24, 2")
    A("s_cselect_b32 s26, 0, s26")
    A("s_mul_i32 s26, s26, 1280")
    A("v_lshrrev_b32 v1, 6, v0")
    A("s_nop 0")
    A("v_readfirstlane_b32 s27, v1")
    A("v_and_b32 v2, 63, v0")
    A("s_lshl_b32 s28, s23, 4")
    A("s_lshl_b32 s29, s27, 2")
    A("s_add_u32 s28, s28, s29")
    A("v_and_b32 v3, 31, v2")
    A("v_lshrrev_b32 v4, 4, v3")
    A("v_lshlrev_b32 v4, 4, v4")
    A("v_bfe_u32 v5, v3, 2, 1")
    A("v_lshl_add_u32 v4, v5, 3, v4")
    A("v_bfe_u32 v5, v3, 3, 1")
    A("v_lshl_add_u32 v4, v5, 2, v4")
    A("v_and_b32 v5, 3, v3")
    A("v_add_u32 v4, v4, v5")
    A("s_lshl_b32 s30, s22, 5")
    A("v_add_u32 v4, s30, v4")
    A("s_mov_b32 s31, 3840")
    A("v_mul_u32_u24 v4, s31, v4")
    A("v_lshrrev_b32 v5, 5, v2")
    A("v_lshl_add_u32 v4, v5, 4, v4")
    A("s_mul_i32 s31, s28, 40")
    A("s_add_u32 s31, s31, s26")
    A("v_add_u32 v4, s31, v4")
    A("s_waitcnt lgkmcnt(0)")
    srd(A, 12, 6, 0, 640 * 3840)
    srd(A, 16, 8, 0, 32 * 800)
    AR = 32
    for hd in range(4):
        for st in range(2):
            A(f"buffer_load_dwordx4 {v(AR+8*hd+4*st,4)}, v4, s[12:15], 0 offen offset:{40*hd+32*st}")
    A("s_mul_i32 s31, s28, 800")
    A("v_lshlrev_b32 v6, 3, v2")
    A("v_add_u32 v6, s31, v6")
    PH = 64
    A("s_cmp_eq_u32 s24, 1")
    A("s_cbranch_scc1 L_t2_nophi")
    for n in range(7):
        A(f"buffer_load_dwordx2 {v(PH+2*n,2)}, v6, s[16:19], 0 offen offset:{512*n}")
    A.label("L_t2_nophi")
    A("s_lshl_b32 s33, s27, 13")
    A("v_lshlrev_b32 v7, 4, v2")
    A("v_add_u32 v7, s33, v7")
    for e in range(4): A(f"v_mov_b32 v{80+e}, 0")
    for n in range(8):
        A(f"ds_write_b128 v7, v[80:83] offset:{1024*n}")
    A("s_cmp_eq_u32 s24, 1")
    A("s_cbranch_scc1 L_t2_ident")
    for n in range(7):
        A(f"v_add_u32 v8, {64*n}, v2")
        vdiv(A, 9, 8, 100, 447, 34)
        A("v_mul_u32_u24 v10, 100, v9")
        A("v_sub_u32 v10, v8, v10")
        vdiv(A, 11, 10, 5, 99, 34)
        A("v_mul_u32_u24 v12, 5, v11")
        A("v_sub_u32 v12, v10, v12")
        A("v_lshlrev_b32 v9, 11, v9")
        A("v_lshl_add_u32 v9, v11, 6, v9")
        A("v_lshl_add_u32 v9, v12, 3, v9")
        A("v_add_u32 v9, s33, v9")
        if n == 6:
            A("v_cmp_gt_u32 vcc, 16, v2")
            A("s_and_saveexec_b64 s[36:37], vcc")
        A(f"s_waitcnt vmcnt({6-n})")
        A(f"ds_write_b64 v9, {v(PH+2*n,2)}")
        if n == 6:
            A("s_mov_b64 exec, s[36:37]")
    A("s_branch L_t2_go")
    A.label("L_t2_ident")
    A("v_mul_u32_u24 v9, 66, v2")
    A("v_add_u32 v9, s33, v9")
    A("v_mov_b32 v10, 0x3f80")
    A("v_cmp_gt_u32 vcc, 20, v2")
    A("s_and_saveexec_b64 s[36:37], vcc")
    for hd in range(4):
        A(f"ds_write_b16 v9, v10 offset:{2048*hd}")
    A("s_mov_b64 exec, s[36:37]")
    A.label("L_t2_go")
    A("v_lshrrev_b32 v8, 5, v2")
    A("v_lshlrev_b32 v8, 3, v8")
    A("v_bfe_u32 v9, v2, 2, 2")
    A("v_add_u32 v8, v8, v9")
    A("v_lshlrev_b32 v8, 6, v8")
    A("v_bfe_u32 v9, v2, 4, 1")
    A("v_lshl_add_u32 v8, v9, 5, v8")
    A("v_and_b32 v9, 3, v2")
    A("v_lshl_add_u32 v8, v9, 3, v8")
    A("v_add_u32 v8, s33, v8")
    A("v_and_b32 v3, 31, v2")
    A("v_add_u32 v9, s25, v3")
    A("v_lshrrev_b32 v10, 4, v9")
    A("v_bfe_u32 v11, v9, 2, 2")
    A("v_lshlrev_b32 v11, 3, v11")
    A("v_and_b32 v12, 3, v9")
    A("v_add_u32 v11, v11, v12")
    A("v_lshrrev_b32 v12, 5, v2")
    A("v_cmp_eq_u32 vcc, 3, v10")
    A("v_mov_b32 v13, 32")
    A("v_mov_b32 v14, 24")
    A("v_cndmask_b32 v13, v13, v14, vcc")
    A("v_mul_u32_u24 v12, v12, v13")
    A("v_add_u32 v11, v11, v12")
    A("v_lshlrev_b32 v11, 4, v11")
    A("s_mul_i32 s35, s22, 6144")
    A("v_lshl_add_u32 v15, v10, 10, s35")
    A("s_mul_i32 s35, s22, 1536")
    A("s_add_u32 s35, s35, 122880")
    A("v_mov_b32 v14, s35")
    A("v_cndmask_b32 v15, v15, v14, vcc")
    A("v_add_u32 v11, v11, v15")
    A("v_mov_b32 v13, 3072")
    A("v_mov_b32 v14, 768")
    A("v_cndmask_b32 v13, v13, v14, vcc")
    A("v_add_u32 v15, v11, v13")
    A("s_lshr_b32 s34, s28, 1")
    A(f"s_mul_i32 s34, s34, {W1P_SL}")
    A("s_mov_b32 s38, 1.0")
    A(f"s_mov_b32 s39, {hex(LOG2E)}")
    A("s_cmp_eq_u32 s24, 1")
    A("s_cselect_b32 s38, s38, s39")
    srd(A, 16, 4, W1P, 16 * W1P_SL)
    A("s_waitcnt lgkmcnt(0)")
    BR = 84
    D = 96
    for hd in range(4):
        for st in range(2):
            A(f"ds_read_b64_tr_b16 {v(BR+4*st,2)}, v8 offset:{2048*hd+1024*st}")
            A(f"ds_read_b64_tr_b16 {v(BR+4*st+2,2)}, v8 offset:{2048*hd+1024*st+256}")
        A(f"s_waitcnt vmcnt(0) lgkmcnt(0)" if hd == 0 else "s_waitcnt lgkmcnt(0)")
        A(f"v_mfma_f32_32x32x16_bf16 {v(D,16)}, {v(AR+8*hd,4)}, {v(BR,4)}, 0")
        A(f"v_mfma_f32_32x32x16_bf16 {v(D,16)}, {v(AR+8*hd+4,4)}, {v(BR+4,4)}, {v(D,16)}")
        A("s_nop 15")
        for r in range(16): A(f"v_mul_f32 v{D+r}, s38, v{D+r}")
        for r in range(8): A(f"v_cvt_pk_bf16_f32 v{112+r}, v{D+2*r}, v{D+2*r+1}")
        A("v_cmp_gt_u32 vcc, 20, v3")
        A("s_and_saveexec_b64 s[36:37], vcc")
        if hd == 2:
            A(f"s_add_u32 s34, s34, {W1P_SL}")
        h = hd & 1
        A(f"buffer_store_dwordx4 v[112:115], v11, s[16:19], s34 offen offset:{64*h}")
        A(f"buffer_store_dwordx4 v[116:119], v15, s[16:19], s34 offen offset:{64*h}")
        A("s_mov_b64 exec, s[36:37]")
        A("s_nop 1")
    A("s_branch L_k0_end")

def t345(A, which):
    base = {3: B_T3, 4: B_T4, 5: B_T5}[which]
    ka = {3: KA_WO, 4: KA_W1, 5: KA_W2}[which]
    noct = {3: 80, 4: 216, 5: 80}[which]
    nitems = {3: 6400, 4: 17280, 5: 17280}[which]
    pitch = {3: 1280, 4: 3456, 5: 1280}[which]
    nrows = {3: 640, 4: 640, 5: 1728}[which]
    A(f"s_load_dwordx2 s[6:7], s[0:1], {ka}")
    A(f"s_sub_u32 s20, s2, {base}")
    A("s_lshl_b32 s20, s20, 8")
    A("v_add_u32 v1, s20, v0")
    A(f"v_cmp_gt_u32 vcc, {nitems}, v1")
    A("s_and_saveexec_b64 s[24:25], vcc")
    A("s_cbranch_execz L_k0_end")
    M, sh = None, None
    for shv in range(32):
        Mv = -(-(1 << shv) // noct)
        if Mv * (nitems + 255) < (1 << 32) and all((n * Mv) >> shv == n // noct for n in range(nitems + 256)):
            M, sh = Mv, shv; break
    A(f"s_mov_b32 s21, {M}")
    A("v_mul_lo_u32 v2, s21, v1")
    A(f"v_lshrrev_b32 v2, {sh}, v2")
    A(f"v_mul_u32_u24 v3, {noct}, v2")
    A("v_sub_u32 v3, v1, v3")
    if which == 3:
        vdiv(A, 4, 2, 5, 127, 22)
        A("v_mul_u32_u24 v5, 5, v4")
        A("v_sub_u32 v5, v2, v5")
        A("v_mul_u32_u24 v4, 40, v4")
        A("v_lshlrev_b32 v6, 3, v5")
        A("v_cmp_le_u32 vcc, 2, v5")
        A("v_add_u32 v7, 4, v6")
        A("s_nop 0")
        A("v_cndmask_b32 v6, v6, v7, vcc")
        A("v_add_u32 v7, 4, v6")
        A("v_cmp_eq_u32 vcc, 4, v5")
        A("v_mov_b32 v8, 16")
        A("v_mov_b32 v9, 36")
        A("v_cndmask_b32 v6, v6, v8, vcc")
        A("v_cndmask_b32 v7, v7, v9, vcc")
        A("v_add_u32 v6, v4, v6")
        A("v_add_u32 v7, v4, v7")
    else:
        A("v_lshrrev_b32 v4, 2, v2")
        A("v_and_b32 v5, 3, v2")
        A("v_lshlrev_b32 v6, 5, v4")
        A("v_lshl_add_u32 v6, v5, 2, v6")
        A("v_add_u32 v7, 16, v6")
    A(f"s_mov_b32 s22, {pitch}")
    A("v_mul_u32_u24 v6, s22, v6")
    A("v_mul_u32_u24 v7, s22, v7")
    A("v_lshl_add_u32 v6, v3, 4, v6")
    A("v_lshl_add_u32 v7, v3, 4, v7")
    A("s_waitcnt lgkmcnt(0)")
    srd(A, 12, 6, 0, nrows * pitch)
    R = 16
    for r in range(4):
        A(f"s_mov_b32 s23, {r*pitch}")
        A(f"buffer_load_dwordx4 {v(R+4*r,4)}, v6, s[12:15], s23 offen")
        A(f"buffer_load_dwordx4 {v(R+16+4*r,4)}, v7, s[12:15], s23 offen")
    A("v_lshrrev_b32 v4, 2, v2")
    A("v_and_b32 v5, 3, v2")
    A("v_and_b32 v8, 1, v3")
    A("v_lshlrev_b32 v8, 7, v8")
    A("v_lshl_add_u32 v8, v5, 8, v8")
    if which == 4:
        A("v_lshrrev_b32 v9, 1, v3")
        A("v_mul_u32_u24 v9, 20, v9")
        A("v_add_u32 v9, v9, v4")
        A("v_lshl_add_u32 v8, v9, 10, v8")
        srd(A, 16, 4, W1F, 108 * 20 * 1024)
    else:
        vdiv(A, 9, 3, 10, 127, 22)
        A("v_mul_u32_u24 v10, 10, v9")
        A("v_sub_u32 v10, v3, v10")
        A("v_lshrrev_b32 v10, 1, v10")
        A("v_mul_u32_u24 v11, 5, v4")
        A("v_add_u32 v10, v10, v11")
        if which == 5:
            for thr, pad in ((14, 3), (28, 3), (40, 1)):
                A(f"v_cmp_le_u32 vcc, {thr}, v4")
                A(f"v_add_u32 v11, {pad}, v10")
                A("s_nop 0")
                A("v_cndmask_b32 v10, v10, v11, vcc")
        A("v_lshl_add_u32 v8, v10, 10, v8")
        sl = WOP_SL if which == 3 else W2P_SL
        A(f"s_mov_b32 s22, {sl}")
        A("v_mul_u32_u24 v9, s22, v9")
        A("v_add_u32 v8, v8, v9")
        srd(A, 16, 4, WOP if which == 3 else W2P, 8 * sl)
    A("s_mov_b32 s26, 0x05040100")
    A("s_mov_b32 s27, 0x07060302")
    A("s_waitcnt vmcnt(0)")
    O = 48
    for e in range(8):
        sel = 26 if e % 2 == 0 else 27
        for p in range(4):
            lo = R + 4 * (2 * p) + (e >> 1)
            hi = R + 4 * (2 * p + 1) + (e >> 1)
            A(f"v_perm_b32 v{O+4*e+p}, v{hi}, v{lo}, s{sel}")
        A(f"buffer_store_dwordx4 {v(O+4*e,4)}, v8, s[16:19], 0 offen offset:{16*e}")
    A("s_branch L_k0_end")

def k0():
    A = Asm()
    A.raw(kernel_header("prep_kernel"))
    A(f"s_cmp_ge_u32 s2, {K0_WGS}")
    A("s_cbranch_scc1 L_k0_exit")
    ST = Stamper(A, 0, 4, 70)
    ST("start")
    A(f"s_load_dwordx2 s[4:5], s[0:1], {KA_WS}")
    if STAMPS:
        A("v_lshrrev_b32 v1, 6, v0")
        A("s_nop 0")
        A("v_readfirstlane_b32 s70, v1")
    A("v_and_b32 v120, 63, v0")
    A("v_lshlrev_b32 v120, 4, v120")
    A("v_lshrrev_b32 v121, 6, v0")
    A("s_lshr_b32 s60, s2, 3")
    A("v_readfirstlane_b32 s61, v121")
    A("s_lshl_b32 s62, s60, 2")
    A("s_add_u32 s62, s62, s61")
    code_prefetch(A, "all", "prep_kernel", "L_code_end", 62, 120, 64, 124)
    A(f"s_cmp_lt_u32 s2, {B_T2}")
    A("s_cbranch_scc1 L_t1")
    A(f"s_cmp_lt_u32 s2, {B_T3}")
    A("s_cbranch_scc1 L_t2")
    A(f"s_cmp_lt_u32 s2, {B_T4}")
    A("s_cbranch_scc1 L_t3")
    A(f"s_cmp_lt_u32 s2, {B_T5}")
    A("s_cbranch_scc1 L_t4")
    A.label("L_t5"); t345(A, 5)
    A.label("L_t4"); t345(A, 4)
    A.label("L_t3")
    A(f"s_cmp_lg_u32 s2, {B_T3}")
    A("s_cbranch_scc1 L_t3_go")
    A("s_waitcnt lgkmcnt(0)")
    srd(A, 12, 4, NONCE, 4)
    A("v_mov_b32 v1, 0")
    A("v_cmp_eq_u32 vcc, 0, v0")
    A("s_and_saveexec_b64 s[24:25], vcc")
    A("s_cbranch_execz L_t3_non")
    A("buffer_load_dword v2, v1, s[12:15], 0 offen")
    A("s_waitcnt vmcnt(0)")
    A("v_add_u32 v2, 1, v2")
    A("buffer_store_dword v2, v1, s[12:15], 0 offen")
    A.label("L_t3_non")
    A("s_mov_b64 exec, s[24:25]")
    A.label("L_t3_go")
    t345(A, 3)
    A.label("L_t2"); t2(A)
    A.label("L_t1"); t1(A)
    A.label("L_k0_end")
    if STAMPS:
        A("s_waitcnt vmcnt(0)")
    ST.flush()
    A.label("L_k0_exit")
    A("s_endpgm")
    return A.text(), kernel_desc("prep_kernel", 128, 0, 102 if STAMPS else 72)
```

```python
from common import *

K1_LDS = 153600
ACC, WB, XA = 64, 128, 0

def k1(interleave_on=True):
    A = Asm()
    ST = Stamper(A, 1, 4, 24)
    A.raw(kernel_header("qkv_kernel"))
    A("s_cmp_ge_u32 s2, 256")
    A("s_cbranch_scc1 L_k1_end")
    ST("start")
    A(f"s_load_dwordx2 s[4:5], s[0:1], {KA_WS}")
    A(f"s_load_dwordx2 s[6:7], s[0:1], {KA_X}")
    A("s_getreg_b32 s27, hwreg(HW_REG_XCC_ID, 0, 4)")
    A("s_and_b32 s20, s2, 7")
    A("s_lshr_b32 s21, s2, 7")
    A("s_bfe_u32 s22, s2, 0x40003")
    A("s_lshl_b32 s23, s20, 1")
    A("s_add_u32 s23, s23, s21")
    A("v_lshrrev_b32 v1, 6, v0")
    A("v_and_b32 v2, 63, v0")
    A("v_readfirstlane_b32 s24, v1")
    A("v_lshlrev_b32 v3, 4, v2")
    A("s_waitcnt lgkmcnt(0)")
    ST("kernarg")
    A(f"s_load_dword s25, s[4:5], {NONCE}")
    A("s_cmp_ge_u32 s24, 2")
    A("s_cbranch_scc1 L_k1_dma")
    XR, AR, SR, XF = 128, 148, 168, 188
    srd(A, 8, 6, 0, 2048 * 1280)
    srd(A, 12, 4, MODV, 7680)
    A("v_and_b32 v4, 15, v2")
    A("v_lshrrev_b32 v5, 4, v2")
    A("s_lshl_b32 s28, s23, 7")
    A("s_lshl_b32 s29, s22, 3")
    A("s_add_u32 s28, s28, s29")
    A("s_lshl_b32 s29, s24, 2")
    A("s_add_u32 s28, s28, s29")
    A("v_add_u32 v6, s28, v5")
    A("s_mov_b32 s29, 1280")
    A("v_mul_u32_u24 v6, s29, v6")
    A("v_lshlrev_b32 v7, 4, v4")
    A("v_add_u32 v6, v6, v7")
    for c in range(5): A(f"buffer_load_dwordx4 {v(XR+4*c,4)}, v6, s[8:11], 0 offen offset:{256*c}")
    for c in range(5): A(f"buffer_load_dwordx4 {v(AR+4*c,4)}, v7, s[12:15], 0 offen offset:{1280+256*c}")
    for c in range(5): A(f"buffer_load_dwordx4 {v(SR+4*c,4)}, v7, s[12:15], 0 offen offset:{256*c}")
    srd(A, 16, 4, XT1, 2048)
    A("s_lshl_b32 s30, s23, 7")
    A("s_lshl_b32 s31, s22, 3")
    A("s_add_u32 s31, s31, s30")
    A("s_waitcnt lgkmcnt(0)")
    A("s_cmp_lg_u32 s24, 0")
    A("s_cbranch_scc1 L_k1_noxt")
    A("v_mov_b32 v8, s31")
    A("v_mov_b32 v10, s25")
    A("v_mov_b32 v11, s27")
    A("s_mov_b64 exec, 1")
    A("buffer_store_dwordx2 v[10:11], v8, s[16:19], 0 offen sc1")
    A("s_mov_b64 exec, -1")
    A.label("L_k1_noxt")
    A("s_lshr_b32 s32, s22, 2")
    A(f"s_mul_i32 s32, s32, {H_ST}")
    A(f"s_mul_i32 s33, s23, {AR_SL}")
    A("s_add_u32 s32, s32, s33")
    A("s_and_b32 s33, s22, 3")
    A("s_lshl_b32 s33, s33, 3")
    A("s_lshl_b32 s34, s33, 4")
    A("s_add_u32 s34, s34, s32")
    A("s_lshl_b32 s43, s24, 15")
    A("s_add_u32 s34, s34, s43")
    A("v_lshlrev_b32 v13, 9, v2")
    A("v_add_u32 v13, s34, v13")
    A("s_lshl_b32 s34, s24, 2")
    A("s_add_u32 s33, s33, s34")
    A("v_add_u32 v9, s33, v5")
    A("v_lshlrev_b32 v9, 4, v9")
    A("v_lshrrev_b32 v12, 1, v4")
    A("v_lshl_add_u32 v9, v12, 10, v9")
    A("v_and_b32 v12, 1, v4")
    A("v_lshl_add_u32 v9, v12, 9, v9")
    A("v_add_u32 v9, s32, v9")
    srd(A, 36, 4, ARENA, AR_SZ)
    A("s_cmp_eq_u32 s24, 0")
    A("s_cselect_b32 s34, 64, 16")
    A("v_cmp_gt_u32 vcc, s34, v2")
    A("v_mov_b32 v12, 0x7ffffff0")
    A("s_nop 0")
    A("v_cndmask_b32 v13, v12, v13, vcc")
    A("buffer_load_dword v23, v13, s[36:39], 0 offen")
    A("s_mov_b32 s35, 0xffff0000")
    A("s_cmp_eq_u32 s24, 0")
    A("s_cbranch_scc1 L_k1_w0wait")
    A("s_waitcnt vmcnt(11)")
    A("s_branch L_k1_waited")
    A.label("L_k1_w0wait")
    A("s_waitcnt vmcnt(12)")
    A.label("L_k1_waited")
    ST("xarrived")
    for q in range(20):
        A(f"v_lshlrev_b32 v{XF+2*q}, 16, v{XR+q}")
        A(f"v_and_b32 v{XF+2*q+1}, s35, v{XR+q}")
    A(f"v_pk_add_f32 v[14:15], {v(XF,2)}, {v(XF+2,2)}")
    for q in range(2, 20): A(f"v_pk_add_f32 v[14:15], v[14:15], {v(XF+2*q,2)}")
    A("v_add_f32 v14, v14, v15")
    dpp_allreduce16(A, 14)
    ST("ln_sum")
    A("v_mul_f32 v14, 0x3acccccd, v14")
    for q in range(20):
        A(f"v_pk_add_f32 {v(XF+2*q,2)}, {v(XF+2*q,2)}, v[14:15] op_sel_hi:[1,0] neg_lo:[0,1] neg_hi:[0,1]")
    A(f"v_pk_mul_f32 v[16:17], {v(XF,2)}, {v(XF,2)}")
    for q in range(1, 20): A(f"v_pk_fma_f32 v[16:17], {v(XF+2*q,2)}, {v(XF+2*q,2)}, v[16:17]")
    A("v_add_f32 v16, v16, v17")
    dpp_allreduce16(A, 16)
    A("v_mov_b32 v17, 0x3727c5ac")
    A("v_fmac_f32 v17, 0x3acccccd, v16")
    ST("ln_var")
    A("v_rsq_f32 v16, v17")
    A("s_nop 0")
    for q in range(20):
        A(f"v_pk_mul_f32 {v(XF+2*q,2)}, {v(XF+2*q,2)}, v[16:17] op_sel_hi:[1,0]")
    A("s_cmp_eq_u32 s24, 0")
    A("s_cbranch_scc1 L_k1_w0wait2")
    A("s_waitcnt vmcnt(1)")
    A.label("L_k1_w0wait2")
    A("s_waitcnt vmcnt(2)")
    ST("ln_mod")
    for q in range(20):
        A(f"v_lshlrev_b32 v18, 16, v{AR+q}")
        A(f"v_and_b32 v19, s35, v{AR+q}")
        A(f"v_lshlrev_b32 v20, 16, v{SR+q}")
        A(f"v_and_b32 v21, s35, v{SR+q}")
        A(f"v_pk_fma_f32 v[18:19], {v(XF+2*q,2)}, v[18:19], v[20:21]")
        A(f"v_cvt_pk_bf16_f32 v{XR+q}, v18, v19")
    A("s_mov_b32 s34, 0")
    for c in range(5):
        A(f"buffer_store_dwordx4 {v(XR+4*c,4)}, v9, s[36:39], s34 offen")
        if c < 4: A("s_add_u32 s34, s34, 8192")
    ST("hstored")
    A("s_cmp_lg_u32 s24, 0")
    A("s_cbranch_scc1 L_k1_w1")
    A("v_and_b32 v8, 15, v2")
    A("v_lshlrev_b32 v8, 3, v8")
    A("v_add_u32 v8, s30, v8")
    poll_equal(A, "xt1", lambda: A("buffer_load_dwordx2 v[22:23], v8, s[16:19], 0 offen sc1"), 22, 25, 42)
    A("v_cmp_ne_u32 vcc, s27, v23")
    A("s_cmp_eq_u64 vcc, 0")
    A("s_cselect_b32 s26, 1, 0")
    ST("acked")
    A("s_barrier")
    srd(A, 16, 4, FL1, 2048)
    A("s_lshl_b32 s31, s22, 2")
    A("s_add_u32 s31, s31, s30")
    A("v_mov_b32 v10, s31")
    A("v_mov_b32 v11, s25")
    publish_flag(A, "h", 16, 10, 11, 26)
    A("v_and_b32 v8, 15, v2")
    A("v_lshlrev_b32 v8, 2, v8")
    A("v_add_u32 v8, s30, v8")
    poll_equal(A, "fl1", lambda: A("buffer_load_dword v22, v8, s[16:19], 0 offen sc1"), 22, 25, 42)
    A("s_barrier")
    A("s_branch L_k1_main")
    A.label("L_k1_w1")
    A("s_waitcnt vmcnt(0)")
    A("s_barrier")
    A("s_barrier")
    A("s_branch L_k1_main")
    A.label("L_k1_dma")
    srd(A, 8, 4, W1P, 16 * W1P_SL)
    A(f"s_mul_i32 s28, s22, {W1P_SL}")
    A("s_sub_u32 s29, s24, 2")
    A("s_mul_i32 s29, s29, 76800")
    A("s_add_u32 s28, s28, s29")
    NB1 = int(os.environ.get("K1_NB1", "40"))
    for n in range(75):
        if n == NB1: A("s_barrier")
        if n % 4 == 0:
            A(f"s_add_u32 m0, s29, {1024*n}")
            if n: A("s_add_u32 s28, s28, 4096")
            else: A("s_nop 0")
        A(f"buffer_load_dwordx4 v3, s[8:11], s28 offen offset:{1024*(n%4)} lds")
    if NB1 >= 75: A("s_barrier")
    A("s_waitcnt vmcnt(0) lgkmcnt(0)")
    A("s_barrier")
    A.label("L_k1_main")
    ST("synced")
    srd(A, 36, 4, ARENA, AR_SZ)
    A(f"s_mul_i32 s28, s23, {AR_SL}")
    A(f"s_mul_i32 s29, s24, {H_ST}")
    A("s_add_u32 s28, s28, s29")
    def xl(ks):
        if ks % 4 == 0 and ks: A("s_add_u32 s28, s28, 4096")
        A(f"buffer_load_dwordx4 {a(XA+4*ks,4)}, v3, s[36:39], s28 offen offset:{1024*(ks%4)} sc1")
    XD = 6
    for ks in range(XD): xl(ks)
    A("v_and_b32 v4, 31, v2")
    A("v_min_u32 v4, 23, v4")
    A("v_lshrrev_b32 v5, 5, v2")
    A("v_mul_u32_u24 v5, 24, v5")
    A("v_add_u32 v4, v4, v5")
    A("v_lshlrev_b32 v4, 4, v4")
    A("v_add_u32 v4, 122880, v4")
    A("v_mov_b32 v5, v3")
    def rdA1(ks, m):
        if m == 0 and ks % 20 == 0 and ks: A("v_add_u32 v5, 61440, v5")
        A(f"ds_read_b128 {v(WB+16*(ks&1)+4*m,4)}, v5 offset:{(ks%20)*3072+1024*m}")
    for m in range(3): rdA1(0, m)
    for ks in range(40):
        left = min(XD - 1, 39 - ks)
        for m in range(3):
            young = 2 if ks < 39 else 2 - m
            A(f"s_waitcnt vmcnt({left}) lgkmcnt({young})" if m == 0 else f"s_waitcnt lgkmcnt({young})")
            c = "0" if ks == 0 else v(ACC+16*m,16)
            A(f"v_mfma_f32_32x32x16_bf16 {v(ACC+16*m,16)}, {v(WB+16*(ks&1)+4*m,4)}, {a(XA+4*ks,4)}, {c}")
            if ks < 39: rdA1(ks + 1, m)
            if m == 1 and ks + XD < 40: xl(ks + XD)
    ST("passA")
    A("s_lshr_b32 s44, s2, 3")
    A("s_lshl_b32 s45, s24, 5")
    A("s_add_u32 s44, s44, s45")
    code_prefetch(A, "k2", "tail_kernel", "L_code_end", 44, 3, 46, 248)
    A(f"s_mul_i32 s49, s23, {AR_SL}")
    A("s_and_b32 s44, s22, 7")
    A("s_mul_i32 s44, s44, 20480")
    A("s_add_u32 s49, s49, s44")
    A("s_cmp_lt_u32 s22, 8")
    A(f"s_mov_b32 s44, {AR_B2}")
    A(f"s_cselect_b32 s44, {AR_B1}, s44")
    A("s_add_u32 s49, s49, s44")
    A("s_mul_i32 s44, s24, 5120")
    A("s_add_u32 s49, s49, s44")
    A("v_min_u32 v252, 39, v2")
    A("v_lshlrev_b32 v252, 7, v252")
    A("buffer_load_dword v253, v252, s[36:39], s49 offen")
    A(f"s_mul_i32 s44, s23, {AR_SL}")
    A("s_mul_i32 s45, s22, 9216")
    A("s_add_u32 s44, s44, s45")
    A("s_mul_i32 s45, s24, 2304")
    A("s_add_u32 s44, s44, s45")
    A(f"s_add_u32 s44, s44, {AR_C}")
    A("v_min_u32 v252, 17, v2")
    A("v_lshlrev_b32 v252, 7, v252")
    A("buffer_load_dword v253, v252, s[36:39], s44 offen")
    srd(A, 52, 4, WOP, 8 * WOP_SL)
    A("s_and_b32 s44, s22, 7")
    A(f"s_mul_i32 s44, s44, {WOP_SL}")
    A("s_lshr_b32 s45, s22, 3")
    A("s_lshl_b32 s50, s21, 1")
    A("s_add_u32 s45, s45, s50")
    A("s_mul_i32 s45, s45, 25600")
    A("s_add_u32 s44, s44, s45")
    A("s_mul_i32 s45, s24, 6400")
    A("s_add_u32 s50, s44, s45")
    wo_pf = [f"buffer_load_dwordx4 v[252:255], v3, s[52:55], s50 offen offset:{1024*n}" for n in range(4)]
    wo_pf += ["s_add_u32 s50, s50, 4096"] + [f"buffer_load_dwordx4 v[252:255], v3, s[52:55], s50 offen offset:{1024*n}" for n in range(3)]
    srd(A, 56, 4, W1F, 108 * 20480)
    A("s_lshr_b32 s44, s22, 2")
    A("s_mul_i32 s44, s44, 27")
    A("s_and_b32 s45, s22, 3")
    A("s_mul_i32 s45, s45, 7")
    A("s_add_u32 s44, s44, s45")
    A("s_mul_i32 s44, s44, 20480")
    A("s_mul_i32 s45, s21, 71680")
    A("s_add_u32 s44, s44, s45")
    A("s_mul_i32 s45, s24, 17920")
    A("s_add_u32 s51, s44, s45")
    w1_pf = []
    for n in range(18):
        if n % 4 == 0 and n: w1_pf.append("s_add_u32 s51, s51, 4096")
        w1_pf.append(f"buffer_load_dwordx4 v[252:255], v3, s[56:59], s51 offen offset:{1024*(n%4)}")
    for ks in range(3): A(f"ds_read_b128 {v(WB+4*ks,4)}, v4 offset:{768*ks}")
    A("s_barrier")
    A("s_nop 3")
    EP, PK, T = 160, 200, 24
    fill = softmax_pm(ACC, EP, PK, T)
    for q in range(10): fill.append(f"v_cvt_pk_bf16_f32 v{220+q}, v{ACC+20+2*q}, v{ACC+21+2*q}")
    pf_all = wo_pf + (w1_pf if "now1pf" not in os.environ.get("EXP", "") else [])
    pf_b = pf_all[:14]; pf_tail = pf_all[14:]
    for k_, x_ in enumerate(pf_b): fill.insert(8 + 12 * k_, x_)
    fill.append("v_mov_b32 v230, 0x3f80")
    fill.append("v_mov_b32 v231, 0")
    fill.append("v_and_b32 v6, 31, v2")
    fill.append("v_lshl_add_u32 v6, s24, 5, v6")
    fill.append("v_mul_u32_u24 v6, 144, v6")
    fill.append("v_lshrrev_b32 v7, 5, v2")
    fill.append("v_mul_u32_u24 v7, 18432, v7")
    fill.append("v_add_u32 v6, v6, v7")
    for q in range(5): fill.append(f"ds_write_b128 v6, {v(PK+4*q,4)} offset:{16*q}")
    for q in range(3): fill.append(f"ds_write_b128 v6, {v(220+4*q,4)} offset:{80+16*q}")
    main = []
    nds = 0
    for ks in range(40):
        pre = []
        if ks + 3 < 40: pre.append(f"ds_read_b128 {v(WB+4*((ks+3)%4),4)}, v4 offset:{768*(ks+3)}")
        c = "0" if ks == 0 else v(ACC+48,16)
        main.append((ks, pre, f"v_mfma_f32_32x32x16_bf16 {v(ACC+48,16)}, {v(WB+4*(ks%4),4)}, {a(XA+4*ks,4)}, {c}"))
    vf = [x for x in fill if not x.startswith("ds_write")]
    dw = [x for x in fill if x.startswith("ds_write")]
    fi = 0
    for ks, pre, mf in main:
        for x in pre: A(x)
        outstanding = min(3, 39 - ks)
        A(f"s_waitcnt lgkmcnt({outstanding})")
        A(mf)
        if interleave_on:
            b = 4
            while fi < len(vf) and b > 0:
                x = vf[fi]; A(x); fi += 1
                b -= 2 if x.split()[0] in ("v_exp_f32", "v_rcp_f32") else 1
    ST("passB")
    for x in vf[fi:]: A(x)
    for x in dw: A(x)
    A("s_waitcnt lgkmcnt(0)")
    A("s_barrier")
    ST("rec")
    A("s_lshr_b32 s28, s24, 1")
    A("s_and_b32 s29, s24, 1")
    A("v_lshrrev_b32 v6, 5, v2")
    A("v_lshlrev_b32 v6, 3, v6")
    A("v_bfe_u32 v7, v2, 2, 2")
    A("v_add_u32 v6, v6, v7")
    A("v_mul_u32_u24 v6, 144, v6")
    A("v_bfe_u32 v7, v2, 4, 1")
    A("v_lshl_add_u32 v6, v7, 5, v6")
    A("v_and_b32 v7, 3, v2")
    A("v_lshl_add_u32 v6, v7, 3, v6")
    A("s_mul_i32 s30, s28, 18432")
    A("v_add_u32 v6, s30, v6")
    A("v_add_u32 v7, 80, v6")
    A("s_lshl_b32 s30, s29, 6")
    A("v_add_u32 v6, s30, v6")
    KA_, KB_, KD = 128, 160, 232
    for k8 in range(8):
        A(f"ds_read_b64_tr_b16 {v(KA_+4*k8,2)}, v6 offset:{2304*k8}")
        A(f"ds_read_b64_tr_b16 {v(KA_+4*k8+2,2)}, v6 offset:{2304*k8+576}")
        A(f"ds_read_b64_tr_b16 {v(KB_+4*k8,2)}, v7 offset:{2304*k8}")
        A(f"ds_read_b64_tr_b16 {v(KB_+4*k8+2,2)}, v7 offset:{2304*k8+576}")
        if k8 % 2 == 1: A("s_waitcnt lgkmcnt(8)" if k8 < 7 else "s_waitcnt lgkmcnt(0)")
    for k8 in range(8):
        c = "0" if k8 == 0 else v(KD,16)
        A(f"v_mfma_f32_32x32x16_bf16 {v(KD,16)}, {v(KA_+4*k8,4)}, {v(KB_+4*k8,4)}, {c}")
    fq = softmax_pm(ACC + 40, 192, 40, T)
    for k_, x_ in enumerate(pf_tail): fq.insert(4 + 9 * k_, x_)
    for x in fq: A(x)
    ST("qsm")
    for q in range(5):
        if q == 4: A("s_add_u32 s49, s49, 4096")
        A(f"buffer_store_dwordx4 {v(40+4*q,4)}, v3, s[36:39], s49 offen offset:{1024*(q%4)}")
    srd(A, 12, 4, KVP, 256 * KVP_SL)
    A("s_lshl_b32 s30, s22, 4")
    A("s_add_u32 s30, s30, s23")
    A(f"s_mul_i32 s30, s30, {KVP_SL}")
    A("s_mul_i32 s31, s28, 1920")
    A("s_add_u32 s30, s30, s31")
    A("s_mul_i32 s31, s29, 1536")
    A("s_add_u32 s30, s30, s31")
    A("v_and_b32 v6, 31, v2")
    A("v_lshlrev_b32 v7, 4, v6")
    A("v_lshrrev_b32 v8, 5, v2")
    A("v_lshl_add_u32 v7, v8, 3, v7")
    for q in range(8): A(f"v_cvt_pk_bf16_f32 v{128+q}, v{KD+2*q}, v{KD+2*q+1}")
    A("v_cmp_gt_u32 vcc, 24, v6")
    A("s_and_saveexec_b64 s[40:41], vcc")
    A("buffer_store_dwordx2 v[128:129], v7, s[12:15], s30 offen")
    A("s_cmp_eq_u32 s29, 1")
    A("s_cbranch_scc1 L_k1_fin")
    for q in range(1, 4): A(f"buffer_store_dwordx2 {v(128+2*q,2)}, v7, s[12:15], s30 offen offset:{384*q}")
    A.label("L_k1_fin")
    ST.flush()
    A.label("L_k1_end")
    A("s_endpgm")
    return A.text(), kernel_desc("qkv_kernel", 256, 160, 102 if STAMPS else 64)
```

```python
from common import *

K2_LDS = 163840
L_KV   = 143360
L_ZERO = L_KV + 3840
L_RED2 = 102400
L_UT   = 145408
L_MV   = L_UT + 1024
L_RED4 = 0
EXP = os.environ.get('EXP', '').split(',')

S_WS, S_X, S_OUT, S_B1, S_B2 = 4, 6, 8, 10, 12
S_XCD, S_I, S_J, S_RB, S_W, S_NONCE, S_MODE, S_XCC = 20, 21, 22, 23, 24, 25, 26, 27
S_C, S_T16, S_GL = 28, 29, 30
S_J0, S_NJ = 31, 32
S_W1B, S_W2B = 36, 43
S_AR, S_T64 = 68, 69
V_LANE, V_L16 = 1, 2
X1 = 32

def sync_point(A, vm, tag, poll_wave, fl_off, pre, mid, post_poll, need=(), ST=None):
    lab = A.uid("L_sp_" + tag)
    A(f"s_cmp_eq_u32 s{S_W}, {poll_wave}")
    A(f"s_cbranch_scc1 {lab}_p")
    pre()
    if ST: n0 = ST.n; ST("sp_pre")
    vm.wait('st')
    if ST: ST("sp_ack")
    A("s_barrier")
    if ST: ST("sp_bar1")
    mid()
    for t in need: vm.wait(t)
    if ST: ST("sp_mid")
    after = list(vm.ops)
    A("s_barrier")
    A(f"s_branch {lab}_j")
    A.label(lab + "_p")
    if ST and STAMPS:
        n1 = ST.n; ST.n = n0; nm = list(ST.names)
        ST("a")
    A("s_waitcnt vmcnt(0)")
    if ST and STAMPS: ST("b")
    A("s_barrier")
    if ST and STAMPS: ST("c")
    srd(A, 16, S_WS, fl_off, 2048)
    A(f"s_lshl_b32 s33, s{S_J}, 2")
    A(f"s_add_u32 s33, s33, s{S_GL}")
    A("v_mov_b32 v10, s33")
    A(f"v_mov_b32 v11, s{S_NONCE}")
    publish_flag(A, tag, 16, 10, 11, S_MODE)
    A(f"v_and_b32 v8, 15, v{V_LANE}")
    A("v_lshlrev_b32 v8, 2, v8")
    A(f"v_add_u32 v8, s{S_GL}, v8")
    poll_equal(A, tag, lambda: A("buffer_load_dword v9, v8, s[16:19], 0 offen sc1"), 9, S_NONCE, 42)
    if ST and STAMPS:
        ST("d"); ST.n = n1; ST.names = nm
    vm.ops = []
    post_poll()
    pend = list(vm.ops)
    A("s_barrier")
    A.label(lab + "_j")
    vm.ops = after if len(after) >= len(pend) else pend
    return after, pend

def k2():
    A = Asm()
    vm = Cnt(A, "vmcnt", 63); lg = Cnt(A, "lgkmcnt", 15)
    ST = Stamper(A, 2, S_WS, S_W)
    A.raw(kernel_header("tail_kernel"))
    A("s_cmp_ge_u32 s2, 256")
    A("s_cbranch_scc1 L_k2_end")
    ST("start")
    A(f"s_load_dwordx2 s[4:5], s[0:1], {KA_WS}")
    A(f"s_load_dwordx2 s[6:7], s[0:1], {KA_X}")
    A(f"s_load_dwordx2 s[8:9], s[0:1], {KA_OUT}")
    A(f"s_load_dwordx2 s[10:11], s[0:1], {KA_B1}")
    A(f"s_load_dwordx2 s[12:13], s[0:1], {KA_B2}")
    A(f"s_getreg_b32 s{S_XCC}, hwreg(HW_REG_XCC_ID, 0, 4)")
    A(f"s_and_b32 s{S_XCD}, s2, 7")
    A(f"s_lshr_b32 s{S_I}, s2, 7")
    A(f"s_bfe_u32 s{S_J}, s2, 0x40003")
    A(f"s_lshl_b32 s{S_RB}, s{S_XCD}, 1")
    A(f"s_add_u32 s{S_RB}, s{S_RB}, s{S_I}")
    A(f"s_and_b32 s{S_C}, s{S_J}, 7")
    A(f"s_lshl_b32 s{S_T16}, s{S_RB}, 3")
    A(f"s_lshr_b32 s33, s{S_J}, 3")
    A(f"s_lshl_b32 s{S_T64}, s33, 2")
    A(f"s_add_u32 s{S_T16}, s{S_T16}, s{S_T64}")
    A(f"s_lshl_b32 s{S_GL}, s{S_RB}, 7")
    A(f"s_lshr_b32 s33, s{S_J}, 2")
    A("s_mul_i32 s33, s33, 27")
    A(f"s_and_b32 s34, s{S_J}, 3")
    A("s_mul_i32 s35, s34, 7")
    A(f"s_add_u32 s{S_J0}, s33, s35")
    A("s_cmp_eq_u32 s34, 3")
    A(f"s_cselect_b32 s{S_NJ}, 6, 7")
    A(f"s_mul_i32 s{S_W1B}, s{S_J0}, 20480")
    A(f"s_mul_i32 s{S_AR}, s{S_RB}, {AR_SL}")
    A("v_lshrrev_b32 v3, 6, v0")
    A(f"v_and_b32 v{V_LANE}, 63, v0")
    A(f"v_readfirstlane_b32 s{S_W}, v3")
    A(f"v_lshlrev_b32 v{V_L16}, 4, v{V_LANE}")
    A("v_lshlrev_b32 v4, 4, v0")
    A("s_waitcnt lgkmcnt(0)")
    A(f"s_load_dword s{S_NONCE}, s[4:5], {NONCE}")
    PR, PQ, SUM = 64, 128, 148
    srd(A, 44, S_WS, KVP, 256 * KVP_SL)
    srd(A, 48, S_WS, ARENA, AR_SZ)
    srd(A, 52, S_WS, WOP, 8 * WOP_SL)
    srd(A, 56, S_WS, W1F, 108 * 20480)
    srd(A, 60, S_WS, W2P, 8 * W2P_SL)
    A(f"s_mul_i32 s64, s{S_J}, {16*KVP_SL}")
    A(f"s_mul_i32 s65, s{S_C}, 20480")
    A(f"s_add_u32 s65, s65, s{S_AR}")
    A(f"s_cmp_lt_u32 s{S_J}, 8")
    A(f"s_mov_b32 s34, {AR_B2}")
    A(f"s_cselect_b32 s34, {AR_B1}, s34")
    A("s_add_u32 s65, s65, s34")
    A(f"s_mul_i32 s34, s{S_W}, 5120")
    A("s_add_u32 s65, s65, s34")
    A(f"s_mul_i32 s66, s{S_C}, {WOP_SL}")
    A(f"s_mul_i32 s67, s{S_W}, 25600")
    A("s_add_u32 s66, s66, s67")
    def ld_kv(p):
        def f():
            vm.issue(f"buffer_load_dwordx4 {v(PR+4*p,4)}, v4, s[44:47], s64 offen", f"kv{p}")
            A(f"s_add_u32 s64, s64, {KVP_SL}")
        return f
    def ld_pq(k):
        def f():
            if k == 4: A("s_add_u32 s65, s65, 4096")
            vm.issue(f"buffer_load_dwordx4 {v(PQ+4*k,4)}, v{V_L16}, s[48:51], s65 offen offset:{1024*(k%4)}", "pq")
        return f
    def ld_wo(n):
        def f():
            A(f"s_add_u32 s33, s66, {4096*(n//4)}")
            vm.issue(f"buffer_load_dwordx4 {a(4*n,4)}, v{V_L16}, s[52:55], s33 offen offset:{1024*(n%4)}", "wo")
        return f
    q = [ld_kv(p) for p in range(16)] + [ld_pq(k) for k in range(5)]
    for f in q[:6]: f()
    q = q[6:]
    qwo = [ld_wo(n) for n in range(25)]
    srd(A, 16, S_WS, XT2, 2048)
    A(f"s_lshl_b32 s33, s{S_J}, 3")
    A(f"s_add_u32 s33, s33, s{S_GL}")
    A("v_mov_b32 v12, 0\nv_mov_b32 v13, 0\nv_mov_b32 v14, 0\nv_mov_b32 v15, 0")
    A(f"v_add_u32 v5, {L_ZERO}, v4")
    A("v_cmp_gt_u32 vcc, 100, v0")
    A("s_and_saveexec_b64 s[40:41], vcc")
    A("ds_write_b128 v5, v[12:15]")
    A("s_mov_b64 exec, s[40:41]")
    A("s_waitcnt lgkmcnt(0)")
    A("v_mov_b32 v18, s33")
    A(f"v_mov_b32 v10, s{S_NONCE}")
    A(f"v_mov_b32 v11, s{S_XCC}")
    A("v_cmp_eq_u32 vcc, 0, v0")
    A("v_mov_b32 v9, 0x7ffffff0")
    A("s_nop 0")
    A("v_cndmask_b32 v18, v9, v18, vcc")
    A("s_mov_b32 s34, 0x00003f80")
    A("s_mov_b32 s35, 0x3f800000")
    for e in range(8): A(f"v_mov_b32 v{SUM+e}, 0")
    A(f"v_and_b32 v5, 31, v{V_LANE}")
    A("v_bfe_u32 v6, v5, 2, 1")
    A(f"v_lshrrev_b32 v7, 5, v{V_LANE}")
    A("v_lshrrev_b32 v8, 3, v5")
    A("v_lshlrev_b32 v8, 2, v8")
    A("v_and_b32 v9, 3, v5")
    A("v_add_u32 v8, v8, v9")
    A("v_mul_u32_u24 v16, 1920, v6")
    A("v_lshl_add_u32 v16, v8, 4, v16")
    A(f"v_add_u32 v16, {L_KV}, v16")
    A("v_add_u32 v17, 256, v16")
    A(f"v_mov_b32 v13, {L_ZERO}")
    A("v_cmp_eq_u32 vcc, v6, v7")
    A("v_cmp_gt_u32 s[40:41], 8, v8")
    A("s_nop 0")
    A("v_cndmask_b32 v16, v13, v16, vcc")
    A("s_and_b64 vcc, vcc, s[40:41]")
    A("s_nop 1")
    A("v_cndmask_b32 v17, v13, v17, vcc")
    srd(A, 72, S_X, 0, 2048 * 1280)
    srd(A, 76, S_WS, MODV, 7680)
    A(f"v_and_b32 v24, 15, v{V_LANE}")
    A(f"v_lshrrev_b32 v25, 4, v{V_LANE}")
    A(f"s_add_u32 s33, s{S_T16}, s{S_W}")
    A("s_lshl_b32 s33, s33, 4")
    A("v_add_u32 v23, s33, v24")
    A("s_mov_b32 s33, 1280")
    A("v_mul_u32_u24 v20, s33, v23")
    A(f"s_mul_i32 s33, s{S_C}, 160")
    A("v_lshl_add_u32 v21, v25, 3, s33")
    A("v_add_u32 v20, v20, v21")
    A("v_add_u32 v22, 4096, v21")
    RX, RG, RA, RMV = 192, 202, 212, 224
    side_res = []
    for J in range(5): side_res.append(lambda J=J: vm.issue(f"buffer_load_dwordx2 {v(RX+2*J,2)}, v20, s[72:75], 0 offen offset:{32*J}", "res"))
    for J in range(5): side_res.append(lambda J=J: vm.issue(f"buffer_load_dwordx2 {v(RG+2*J,2)}, v21, s[76:79], 0 offen offset:{2560+32*J}", "res"))
    for J in range(5): side_res.append(lambda J=J: vm.issue(f"buffer_load_dwordx2 {v(RA+2*J,2)}, v22, s[76:79], 0 offen offset:{1024+32*J}", "res"))
    side_res.append(lambda: vm.issue(f"buffer_load_dwordx4 {v(RMV,4)}, v4, s[76:79], 0 offen offset:3840", "res"))
    for p in range(16):
        vm.wait(f"kv{p}")
        for e in range(4):
            A(f"v_dot2_f32_bf16 v{SUM+2*e}, v{PR+4*p+e}, s34, v{SUM+2*e}")
            A(f"v_dot2_f32_bf16 v{SUM+2*e+1}, v{PR+4*p+e}, s35, v{SUM+2*e+1}")
        take, q = q[:1], q[1:]
        for f in take: f()
        if p == 14: vm.issue("buffer_store_dwordx2 v[10:11], v18, s[16:19], 0 offen sc1", "xt")
        if p >= 8:
            take, qwo = qwo[:2], qwo[2:]
            for f in take: f()
    ST("kvred")
    for e in range(4): A(f"v_cvt_pk_bf16_f32 v{SUM+8+e}, v{SUM+2*e}, v{SUM+2*e+1}")
    A(f"v_add_u32 v5, {L_KV}, v4")
    A("v_cmp_gt_u32 vcc, 240, v0")
    A("s_and_saveexec_b64 s[40:41], vcc")
    A(f"ds_write_b128 v5, {v(SUM+8,4)}")
    A("s_mov_b64 exec, s[40:41]")
    A("s_waitcnt lgkmcnt(0)")
    A("s_barrier")
    AF, OA = 64, 160
    for mt in range(2):
        for ks in range(5):
            lg.issue(f"ds_read_b128 {v(AF+20*mt+4*ks,4)}, v{16+mt} offset:{384*ks}", "af")
    srd(A, 44, S_WS, ARENA, AR_SZ)
    A(f"v_and_b32 v5, 31, v{V_LANE}")
    A("v_lshrrev_b32 v6, 4, v5")
    A(f"s_lshl_b32 s33, s{S_W}, 1")
    A("v_add_u32 v6, s33, v6")
    A(f"s_mov_b32 s34, {O_ST}")
    A("v_mul_u32_u24 v6, s34, v6")
    A("v_and_b32 v5, 15, v5")
    A("v_lshl_add_u32 v6, v5, 4, v6")
    A(f"s_mul_i32 s34, s{S_J}, 1280")
    A(f"s_add_u32 s34, s34, s{S_AR}")
    A("v_add_u32 v6, s34, v6")
    A(f"v_lshrrev_b32 v7, 5, v{V_LANE}")
    A("v_lshl_add_u32 v8, v7, 9, v6")
    A("v_lshl_add_u32 v6, v7, 3, v6")
    vm.wait("pq")
    lg.drain()
    for ks in range(5):
        for mt in range(2):
            c = "0" if ks == 0 else v(OA+16*mt,16)
            A(f"v_mfma_f32_32x32x16_bf16 {v(OA+16*mt,16)}, {v(AF+20*mt+4*ks,4)}, {v(PQ+4*ks,4)}, {c}")
    srd(A, 44, S_WS, ARENA, AR_SZ)
    for f in qwo[:3]: f()
    qwo = qwo[3:]
    for f in side_res[:6]: f()
    A("s_nop 7")
    A(f"v_add_f32 v5, 0x358637bd, v{OA+16+4}")
    A("v_rcp_f32 v5, v5")
    A("s_nop 0")
    src = [OA + d for d in range(16)] + [OA + 16 + d for d in range(4)]
    for d in range(20): A(f"v_mul_f32 v{src[d]}, v{src[d]}, v5")
    for e in range(10): A(f"v_cvt_pk_bf16_f32 v{104+e}, v{src[2*e]}, v{src[2*e+1]}")
    vm.issue("buffer_store_dwordx4 v[104:107], v8, s[44:47], 0 offen", "st")
    vm.issue("buffer_store_dwordx4 v[108:111], v8, s[44:47], 0 offen offset:256", "st")
    vm.issue("buffer_store_dwordx2 v[112:113], v6, s[44:47], 0 offen offset:1024", "st")
    ST("ostored")
    rest_wo = qwo + side_res[6:]
    A(f"s_cmp_lg_u32 s{S_W}, 0")
    A("s_cbranch_scc1 L_k2_nomode")
    srd(A, 16, S_WS, XT2, 2048)
    A(f"v_and_b32 v8, 15, v{V_LANE}")
    A("v_lshlrev_b32 v8, 3, v8")
    A(f"v_add_u32 v8, s{S_GL}, v8")
    for f in rest_wo: f()
    del vm.ops[-len(rest_wo):]
    poll_equal(A, "xt2", lambda: A("buffer_load_dwordx2 v[10:11], v8, s[16:19], 0 offen sc1"), 10, S_NONCE, 42)
    A(f"v_cmp_ne_u32 vcc, s{S_XCC}, v11")
    A("s_cmp_eq_u64 vcc, 0")
    A(f"s_cselect_b32 s{S_MODE}, 1, 0")
    A.label("L_k2_nomode")
    def w1_dma(first, count, nw=3):
        A(f"s_mul_i32 s38, s38, {1024*count}")
        A(f"s_add_u32 s38, s38, {1024*first}")
        A(f"s_add_u32 s37, s{S_W1B}, s38")
        ops = []
        for n in range(count):
            def f(n=n):
                if n % 4 == 0:
                    A(f"s_add_u32 m0, s38, {1024*n}")
                    if n: A("s_add_u32 s37, s37, 4096")
                    else: A("s_nop 0")
                vm.issue(f"buffer_load_dwordx4 v{V_L16}, s[56:59], s37 offen offset:{1024*(n%4)} lds", "w1")
            ops.append(f)
        return ops
    def rank(poll_wave):
        A(f"s_cmp_gt_u32 s{S_W}, {poll_wave}")
        A("s_cselect_b32 s38, 1, 0")
        A(f"s_sub_u32 s38, s{S_W}, s38")
    def pre_o():
        for f in rest_wo: f()
    def mid_o():
        rank(0)
        for f in w1_dma(0, 20): f()
    sync_point(A, vm, "o", 0, FL2A, pre_o, mid_o, lambda: None, ST=ST if 'spo' in EXP else None)
    ST("osync")
    def red_write(n, accbase, red):
        A(f"s_add_u32 s33, s{S_W}, {n+1}")
        A("s_and_b32 s33, s33, 3")
        A("s_mul_i32 s33, s33, 15360")
        A(f"s_add_u32 s33, s33, {red + (2-n)*5120}")
        A(f"v_add_u32 v5, s33, v{V_L16}")
        return [lambda J=J: lg.issue(f"ds_write_b128 v5, {v(accbase+4*J,4)} offset:{1024*J}", "rw") for J in range(5)]
    def ksplit(nk, wreg, xr, nslot, depth, ac, red, side, redat, tagx, late=()):
        items = [(n, mm) for n in range(4) for mm in range(nk)]
        late = list(late)
        def xl(k):
            n, mm = items[k]
            def f():
                if mm % 4 == 0 and mm: A(f"s_add_u32 s{64+n}, s{64+n}, 4096")
                vm.issue(f"buffer_load_dwordx4 {v(xr+4*(k%nslot),4)}, v{V_L16}, s[44:47], s{64+n} offen offset:{1024*(mm%4)} sc1", f"{tagx}_{k}")
            return f
        for k in range(depth): xl(k)()
        nxt = depth
        wq = []
        for k, (n, mm) in enumerate(items):
            acc = ac + 20 * (n & 1)
            vm.wait(f"{tagx}_{k}")
            if k == 0: ST(tagx + "first") if (tagx == "x2" or nk == 14) else None
            ex = []
            if nxt < len(items):
                ex.append(xl(nxt)); nxt += 1
            elif late:
                ex.append(late.pop(0))
                if late: ex.append(late.pop(0))
            if mm == redat and n > 0: wq = red_write(n - 1, ac + 20 * ((n - 1) & 1), red)
            if wq: ex.append(wq.pop(0))
            if side and k >= 2: ex.append(side.pop(0))
            for J in range(5):
                A(f"v_mfma_f32_16x16x32_bf16 {v(acc+4*J,4)}, {wreg(5*mm+J)}, {v(xr+4*(k%nslot),4)}, {'0' if mm == 0 else v(acc+4*J,4)}")
                if ex: ex.pop(0)()
            for e in ex: e()
            if mm == nk - 1:
                for e in wq: e()
                wq = []
        for f in side: f()
        for f in late: f()
        lg.drain()
    def red_sum(red, own, tmp):
        A(f"s_mul_i32 s33, s{S_W}, 15360")
        A(f"s_add_u32 s33, s33, {red}")
        A(f"v_add_u32 v5, s33, v{V_L16}")
        for sl in range(3):
            for J in range(5): lg.issue(f"ds_read_b128 {v(tmp+20*sl+4*J,4)}, v5 offset:{5120*sl+1024*J}", f"rr{sl}")
        for sl in range(3):
            lg.wait(f"rr{sl}")
            for e in range(10): A(f"v_pk_add_f32 {v(own+2*e,2)}, {v(own+2*e,2)}, {v(tmp+20*sl+2*e,2)}")
    AC = 144
    for n in range(4):
        A(f"s_add_u32 s33, s{S_W}, {n+1}")
        A("s_and_b32 s33, s33, 3")
        A(f"s_add_u32 s33, s33, s{S_T64}")
        A(f"s_mul_i32 s33, s33, {O_ST}")
        A(f"s_add_u32 s33, s33, s{S_AR}")
        A(f"s_mul_i32 s34, s{S_W}, 5120")
        A(f"s_add_u32 s{64+n}, s33, s34")
    srd(A, 16, S_WS, XT2, 2048)
    A(f"v_and_b32 v8, 15, v{V_LANE}")
    A("v_lshlrev_b32 v8, 3, v8")
    A(f"v_add_u32 v8, s{S_GL}, v8")
    side = [lambda: vm.issue("buffer_load_dwordx2 v[18:19], v8, s[16:19], 0 offen sc1", "res")]
    A(f"s_mov_b32 s38, s{S_W}")
    late2 = w1_dma(60, 10)
    ksplit(5, lambda fr: a(4*fr,4), 64, 8, 6, AC, L_RED2, side, 1, "x2", late=late2)
    ST("g2main")
    A("s_barrier")
    red_sum(L_RED2, AC + 20, 64)
    OWN = AC + 20
    A("s_barrier")
    vm.wait("res")
    A(f"v_cmp_ne_u32 vcc, s{S_XCC}, v19")
    A("s_cmp_eq_u64 vcc, 0")
    A(f"s_cselect_b32 s{S_MODE}, 1, 0")
    A("v_lshlrev_b32 v4, 4, v0")
    A(f"v_add_u32 v9, {L_MV}, v4")
    A("v_cmp_gt_u32 vcc, 160, v0")
    A("s_and_saveexec_b64 s[40:41], vcc")
    A(f"ds_write_b128 v9, {v(RMV,4)}")
    A("s_mov_b64 exec, s[40:41]")
    A("s_mov_b32 s35, 0xffff0000")
    for e in range(10):
        A(f"v_lshlrev_b32 v12, 16, v{RX+e}")
        A(f"v_and_b32 v13, s35, v{RX+e}")
        A(f"v_lshlrev_b32 v14, 16, v{RG+e}")
        A(f"v_and_b32 v15, s35, v{RG+e}")
        A(f"v_pk_fma_f32 v[12:13], {v(OWN+2*e,2)}, v[14:15], v[12:13]")
        A(f"v_cvt_pk_bf16_f32 v16, v12, v13")
        A(f"v_lshlrev_b32 v{X1+2*e}, 16, v16")
        A(f"v_and_b32 v{X1+2*e+1}, s35, v16")
    XS = 64
    for e in range(10):
        A(f"v_lshlrev_b32 v14, 16, v{RA+e}")
        A(f"v_and_b32 v15, s35, v{RA+e}")
        A(f"v_pk_mul_f32 v[12:13], {v(X1+2*e,2)}, v[14:15]")
        A(f"v_cvt_pk_bf16_f32 v{XS+e}, v12, v13")
    A(f"s_add_u32 s33, s{S_T64}, s{S_W}")
    A(f"s_mul_i32 s33, s33, {XS_ST}")
    A(f"s_add_u32 s33, s33, s{S_AR}")
    A(f"s_add_u32 s33, s33, {AR_B1}")
    for J in range(5):
        A(f"s_mul_i32 s34, s{S_C}, 5")
        A(f"s_add_u32 s34, s34, {J}")
        A("s_lshr_b32 s37, s34, 1")
        A("s_lshl_b32 s37, s37, 10")
        A("s_and_b32 s34, s34, 1")
        A("s_lshl_b32 s34, s34, 3")
        A("s_add_u32 s34, s34, s37")
        A("s_add_u32 s34, s34, s33")
        vm.issue(f"buffer_store_dwordx2 {v(XS+2*J,2)}, v{V_L16}, s[44:47], s34 offen", "st")
    A(f"v_pk_add_f32 v[12:13], {v(X1,2)}, {v(X1+2,2)}")
    for e in range(2, 10): A(f"v_pk_add_f32 v[12:13], v[12:13], {v(X1+2*e,2)}")
    A("v_add_f32 v12, v12, v13")
    xrow_allreduce(A, 12, 13)
    A("v_mul_f32 v14, 0x3c4ccccd, v12")
    for e in range(10):
        A(f"v_pk_add_f32 v[16:17], {v(X1+2*e,2)}, v[14:15] op_sel_hi:[1,0] neg_lo:[0,1] neg_hi:[0,1]")
        if e == 0: A("v_pk_mul_f32 v[18:19], v[16:17], v[16:17]")
        else: A("v_pk_fma_f32 v[18:19], v[16:17], v[16:17], v[18:19]")
    A("v_add_f32 v13, v18, v19")
    xrow_allreduce(A, 13, 14)
    srd(A, 48, S_WS, STATS, 2048 * 64)
    A("v_lshlrev_b32 v14, 6, v23")
    A(f"s_lshl_b32 s33, s{S_C}, 3")
    A("v_add_u32 v14, s33, v14")
    A(f"v_cmp_gt_u32 vcc, 16, v{V_LANE}")
    A("v_mov_b32 v15, 0x7ffffff0")
    A("s_nop 0")
    A("v_cndmask_b32 v14, v15, v14, vcc")
    vm.issue("buffer_store_dwordx2 v[12:13], v14, s[48:51], 0 offen", "st")
    ST("x1stored")
    A(f"s_mul_i32 s33, s{S_W}, 73")
    A(f"s_cmp_eq_u32 s{S_W}, 3")
    A("s_cselect_b32 s34, 12, 0")
    A("s_sub_u32 s33, s33, s34")
    A("s_lshl_b32 s33, s33, 10")
    A(f"s_mul_i32 s{S_W2B}, s{S_C}, {W2P_SL}")
    A(f"s_add_u32 s{S_W2B}, s{S_W2B}, s33")
    def w2_reg(fr):
        return a(4*fr,4) if fr < 64 else v(232+4*(fr-64),4)
    def w2_ld(fr):
        def f():
            A(f"s_add_u32 s33, s{S_W2B}, {4096*(fr//4)}")
            vm.issue(f"buffer_load_dwordx4 {w2_reg(fr)}, v{V_L16}, s[60:63], s33 offen offset:{1024*(fr%4)}", "w2")
        return f
    def pre_x():
        rank(1)
        for f in w1_dma(100, 14): f()
    sync_point(A, vm, "x", 1, FL2B, pre_x, lambda: None, lambda: None, ST=ST if 'spx' in EXP else None)
    ST("xsync")
    ACC3, WB3, XR3 = 64, 120, 176
    UA, UB = 224, 24
    A(f"s_lshl_b32 s34, s{S_W}, 1")
    A(f"s_mul_i32 s64, s34, {XS_ST}")
    A(f"s_add_u32 s64, s64, s{S_AR}")
    A(f"s_add_u32 s64, s64, {AR_B1}")
    A(f"s_add_u32 s65, s64, {XS_ST}")
    A(f"s_lshl_b32 s33, s{S_RB}, 3")
    A("s_add_u32 s33, s33, s34")
    def x3_load(ks, tt):
        def f():
            if ks % 4 == 0 and ks: A(f"s_add_u32 s{64+tt}, s{64+tt}, 4096")
            vm.issue(f"buffer_load_dwordx4 {v(XR3+8*(ks%6)+4*tt,4)}, v{V_L16}, s[44:47], s{64+tt} offen offset:{1024*(ks%4)} sc1", f"x3_{ks}")
        return f
    for ks in range(3):
        for tt in range(2): x3_load(ks, tt)()
    srd(A, 48, S_WS, STATS, 2048 * 64)
    A(f"v_and_b32 v5, 15, v{V_LANE}")
    A(f"v_lshrrev_b32 v6, 4, v{V_LANE}")
    A("s_lshl_b32 s33, s33, 4")
    A("v_add_u32 v7, s33, v5")
    A("v_lshlrev_b32 v7, 6, v7")
    A("v_lshl_add_u32 v7, v6, 4, v7")
    srd(A, 52, S_B1, 0, 3456)
    A(f"s_add_u32 s33, s{S_J0}, s{S_W}")
    A("s_lshl_b32 s33, s33, 5")
    A("v_lshl_add_u32 v8, v6, 3, s33")
    side = [lambda: vm.issue("buffer_load_dwordx4 v[52:55], v7, s[48:51], 0 offen sc1", "stat"),
            lambda: vm.issue("buffer_load_dwordx4 v[56:59], v7, s[48:51], 0 offen offset:1024 sc1", "stat"),
            lambda: vm.issue("buffer_load_dwordx2 v[60:61], v8, s[52:55], 0 offen", "stat"),
            lambda: vm.issue("buffer_load_dwordx2 v[62:63], v8, s[52:55], 0 offen offset:128", "stat")]
    A(f"v_mov_b32 v3, v{V_L16}")
    A(f"v_add_u32 v4, 65536, v{V_L16}")
    A(f"v_add_u32 v5, 131072, v{V_L16}")
    A(f"v_and_b32 v9, 1, v{V_LANE}")
    A("v_xor_b32 v9, 1, v9")
    A("v_mul_u32_u24 v9, 1280, v9")
    A("v_lshl_add_u32 v9, v6, 3, v9")
    A(f"v_add_u32 v9, {L_MV}, v9")
    def w3_read(ks, J):
        def f():
            off = J * 20480 + ks * 1024
            reg = 3 if off < 65536 else (4 if off < 131072 else 5)
            lg.issue(f"ds_read_b128 {v(WB3+28*(ks&1)+4*J,4)}, v{reg} offset:{off % 65536}", f"w3_{ks}_{J}")
        return f
    def ub_read(ks, h):
        return lambda: lg.issue(f"ds_read_b64 {v(UB+4*(ks&1)+2*h,2)}, v9 offset:{64*ks+32*h}", f"u3_{ks}")
    A("s_waitcnt vmcnt(6)")
    A("s_waitcnt lgkmcnt(0)")
    A("s_barrier")
    vm.ops = [o for o in vm.ops if o.startswith("x3_")]
    for J in range(7): w3_read(0, J)()
    for h in range(2): ub_read(0, h)()
    A(f"s_mul_i32 s33, s{S_W}, 20480")
    A(f"v_add_u32 v16, s33, v{V_L16}")
    A("v_add_u32 v17, 81920, v16")
    UWB = 240
    def uw_rd(ks, t_):
        return lambda: lg.issue(f"ds_read_b128 {v(UWB+8*(ks&1)+4*t_,4)}, v{16+t_} offset:{1024*ks}", f"u3_{ks}")
    for t_ in range(2): uw_rd(0, t_)()
    W2_G3 = 0 if 'now2' in EXP else 30
    early = list(range(W2_G3))
    for ks in range(20):
        vm.wait(f"x3_{ks}")
        if ks == 0: ST("x3first")
        ld = []
        if ks + 3 < 20: ld += [x3_load(ks+3, 0), x3_load(ks+3, 1)]
        if side: ld.append(side.pop(0))
        for _ in range(1 if ks % 2 == 0 else 2):
            if early: ld.append(w2_ld(early.pop(0)))
        uq = [ub_read(ks+1, 0), ub_read(ks+1, 1), uw_rd(ks+1, 0), uw_rd(ks+1, 1)] if ks < 19 else []
        for J in range(7):
            lg.wait(f"w3_{ks}_{J}")
            for tt in range(2):
                d = ACC3 + 8 * J + 4 * tt
                A(f"v_mfma_f32_16x16x32_bf16 {v(d,4)}, {v(WB3+28*(ks&1)+4*J,4)}, {v(XR3+8*(ks%6)+4*tt,4)}, {'0' if ks == 0 else v(d,4)}")
                if tt == 0:
                    if ks < 19: w3_read(ks+1, J)()
                else:
                    if ld: ld.pop(0)()
        lg.wait(f"u3_{ks}")
        for t_ in range(2):
            A(f"v_mfma_f32_16x16x32_bf16 {v(UA+4*t_,4)}, {v(UWB+8*(ks&1)+4*t_,4)}, {v(UB+4*(ks&1),4)}, {'0' if ks == 0 else v(UA+4*t_,4)}")
            for _ in range(2):
                if uq: uq.pop(0)()
        for e in ld: e()
    ST("g3main")
    vm.wait("stat")
    A(f"v_and_b32 v7, 15, v{V_LANE}")
    A("v_lshlrev_b32 v9, 6, v7")
    A("v_lshl_add_u32 v9, v6, 4, v9")
    A(f"s_lshl_b32 s33, s{S_W}, 7")
    A(f"s_add_u32 s33, s33, {L_UT}")
    A("v_add_u32 v9, s33, v9")
    A("s_mov_b32 s35, 0xffff0000")
    A("v_cmp_eq_u32 vcc, 1, v7")
    for t_ in range(2):
        r = 60 + 2 * t_
        A(f"v_lshlrev_b32 v16, 16, v{r}")
        A(f"v_and_b32 v17, s35, v{r}")
        A(f"v_lshlrev_b32 v18, 16, v{r+1}")
        A(f"v_and_b32 v19, s35, v{r+1}")
        for e in range(4):
            A(f"v_cndmask_b32 v{16+e}, 0, v{16+e}, vcc")
            A(f"v_add_f32 v{UA+4*t_+e}, v{UA+4*t_+e}, v{16+e}")
    A("v_cmp_gt_u32 vcc, 2, v7")
    A("s_and_saveexec_b64 s[40:41], vcc")
    A(f"ds_write_b128 v9, {v(UA,4)}")
    A(f"s_cmp_eq_u32 s{S_W}, 3")
    A("s_cbranch_scc1 L_k2_ut3")
    A(f"ds_write_b128 v9, {v(UA+4,4)} offset:512")
    A.label("L_k2_ut3")
    A("s_mov_b64 exec, s[40:41]")
    for tt in range(2):
        b = 52 + 4 * tt
        A(f"v_add_f32 v12, v{b}, v{b+2}")
        xrow_allreduce(A, 12, 13)
        A("v_mul_f32 v12, 0x3acccccd, v12")
        A(f"v_mul_f32 v14, 0x3c4ccccd, v{b}")
        A(f"v_mul_f32 v15, 0x3c4ccccd, v{b+2}")
        A("v_sub_f32 v14, v14, v12")
        A("v_sub_f32 v15, v15, v12")
        A("v_mul_f32 v14, v14, v14")
        A("v_fmac_f32 v14, v15, v15")
        A(f"v_add_f32 v15, v{b+1}, v{b+3}")
        A("v_fmac_f32 v15, 0x42a00000, v14")
        xrow_allreduce(A, 15, 13)
        A("v_mov_b32 v13, 0x3727c5ac")
        A("v_fmac_f32 v13, 0x3acccccd, v15")
        A("v_rsq_f32 v13, v13")
        A("s_nop 0")
        A(f"v_mov_b32 v{b}, v13")
        A(f"v_mul_f32 v{b+1}, v13, v12")
    A("s_waitcnt lgkmcnt(0)")
    lg.reset()
    A("s_barrier")
    A(f"s_lshl_b32 s34, s{S_W}, 1")
    A(f"s_mul_i32 s64, s34, {H1_ST}")
    A(f"s_add_u32 s64, s64, s{S_AR}")
    A(f"s_add_u32 s65, s64, {H1_ST}")
    A(f"v_lshlrev_b32 v6, 4, v6")
    A(f"v_add_u32 v6, {L_UT}, v6")
    for J in range(7):
        lg.issue(f"ds_read_b128 {v(120+8*J,4)}, v6 offset:{128*J}", f"ut{J}")
        lg.issue(f"ds_read_b128 {v(124+8*J,4)}, v6 offset:{128*J+64}", f"ut{J}")
    late = list(range(W2_G3, 70))
    epi_ld = late[:12]; late = late[12:]
    for J in range(7):
        lg.wait(f"ut{J}")
        if J == 6:
            A(f"s_cmp_eq_u32 s{S_NJ}, 6")
            A("s_cbranch_scc1 L_k2_h1done")
        A(f"s_add_u32 s37, s{S_J0}, {J}")
        A("s_lshr_b32 s34, s37, 1")
        A("s_cmp_ge_u32 s34, 28")
        A("s_cselect_b32 s38, 4, 2")
        A("s_cmp_ge_u32 s34, 14")
        A("s_cselect_b32 s38, s38, 0")
        A("s_add_u32 s34, s34, s38")
        A("s_lshl_b32 s34, s34, 10")
        A("s_and_b32 s37, s37, 1")
        A("s_lshl_b32 s37, s37, 3")
        A("s_add_u32 s37, s37, s34")
        for tt in range(2):
            b = 52 + 4 * tt
            d = ACC3 + 8 * J + 4 * tt
            U, T = 120 + 8 * J, 124 + 8 * J
            for hlf in range(2):
                A(f"v_pk_fma_f32 v[12:13], {v(U+2*hlf,2)}, {v(b,2)}, {v(T+2*hlf,2)} op_sel:[0,1,0] op_sel_hi:[1,1,1] neg_lo:[0,1,0] neg_hi:[0,1,0]")
                A(f"v_pk_fma_f32 v[12:13], {v(d+2*hlf,2)}, {v(b,2)}, v[12:13] op_sel_hi:[1,0,1]")
                A("v_max_f32 v14, 0, v12")
                A("v_max_f32 v15, 0, v13")
                A("v_pk_mul_f32 v[12:13], v[14:15], v[14:15]")
                A(f"v_cvt_pk_bf16_f32 v{16+hlf}, v12, v13")
            A(f"s_add_u32 s34, s37, s{64+tt}")
            vm.issue(f"buffer_store_dwordx2 v[16:17], v{V_L16}, s[44:47], s34 offen", "st")
            if J < 6 and epi_ld: w2_ld(epi_ld.pop(0))()
            else: A("s_nop 0")
    A.label("L_k2_h1done")
    assert not epi_ld
    A("s_waitcnt lgkmcnt(0)")
    lg.reset()
    ST("h1stored")
    def pre_h():
        for fr in late: w2_ld(fr)()
    def post_h():
        for fr in late:
            if fr < 60: w2_ld(fr)()
    after, pend = sync_point(A, vm, "h", 2, FL2C, pre_h, lambda: None, post_h, ST=ST if 'sph' in EXP else None)
    ST("hsync")
    AC4 = 128
    RB2, RGB = 168, 178
    srd(A, 48, S_B2, 0, 1280)
    srd(A, 52, S_WS, MODV, 7680)
    A(f"s_lshl_b32 s34, s{S_W}, 4")
    A(f"s_cmp_eq_u32 s{S_W}, 3")
    A("s_cselect_b32 s34, 44, s34")
    A("s_lshl_b32 s34, s34, 10")
    for n in range(4):
        A(f"s_add_u32 s33, s{S_W}, {n+1}")
        A("s_and_b32 s33, s33, 3")
        A(f"s_add_u32 s33, s33, s{S_T64}")
        A(f"s_mul_i32 s33, s33, {H1_ST}")
        A(f"s_add_u32 s33, s33, s{S_AR}")
        A(f"s_add_u32 s{64+n}, s33, s34")
    def g4(nk, start_ops):
        vm.ops = list(start_ops)
        side = [lambda J=J: vm.issue(f"buffer_load_dwordx2 {v(RB2+2*J,2)}, v21, s[48:51], 0 offen offset:{32*J}", "res4") for J in range(5)]
        side += [lambda J=J: vm.issue(f"buffer_load_dwordx2 {v(RGB+2*J,2)}, v22, s[52:55], 0 offen offset:{2304+32*J}", "res4") for J in range(5)]
        ksplit(nk, w2_reg, 64, 9, 7, AC4, L_RED4, side, 2, "x4")
    A(f"s_cmp_eq_u32 s{S_W}, 2")
    A("s_cbranch_scc1 L_k2_g4b")
    g4(14, after)
    A("s_branch L_k2_g4j")
    A.label("L_k2_g4b")
    g4(12, pend)
    A.label("L_k2_g4j")
    ST("g4main")
    A("s_barrier")
    red_sum(L_RED4, AC4 + 20, 64)
    OWN = AC4 + 20
    A("s_waitcnt vmcnt(0)")
    srd(A, 44, S_OUT, 0, 2048 * 1280)
    A("s_mov_b32 s35, 0xffff0000")
    for e in range(10):
        A(f"v_lshlrev_b32 v12, 16, v{RB2+e}")
        A(f"v_and_b32 v13, s35, v{RB2+e}")
        A(f"v_lshlrev_b32 v14, 16, v{RGB+e}")
        A(f"v_and_b32 v15, s35, v{RGB+e}")
        A(f"v_pk_add_f32 v[12:13], v[12:13], {v(OWN+2*e,2)}")
        A(f"v_pk_fma_f32 v[12:13], v[12:13], v[14:15], {v(X1+2*e,2)}")
        A(f"v_cvt_pk_bf16_f32 v{64+e}, v12, v13")
    for J in range(5):
        A(f"buffer_store_dwordx2 {v(64+2*J,2)}, v20, s[44:47], 0 offen offset:{32*J}")
    ST.flush()
    A.label("L_k2_end")
    A("s_endpgm")
    return A.text(), kernel_desc("tail_kernel", 256, 256, 102 if STAMPS else 88)
```

```python
KA_X, KA_WQKV, KA_WPHI, KA_WO, KA_BX, KA_W1, KA_B1, KA_W2, KA_B2, KA_C, KA_WMOD, KA_OUT, KA_DBG, KA_WS = [8*i for i in range(14)]

MODV   = 0x0000
NONCE  = 0x2000
XT1    = 0x3000
FL1    = 0x4000
XT2    = 0x5000
FL2A   = 0x6000
FL2B   = 0x7000
FL2C   = 0x8000
W1P    = 0x10000
W1P_SL = 153600
WOP    = W1P + 16 * W1P_SL
WOP_SL = 102400
W1F    = WOP + 8 * WOP_SL
W2P    = W1F + 108 * 20 * 1024
W2P_SL = 280 * 1024
KVP    = W2P + 8 * W2P_SL
KVP_SL = 3840
STATS  = KVP + 256 * KVP_SL
ARENA  = STATS + 2048 * 64
H_ST   = 41 * 1024
O_ST   = 20 * 1024
XS_ST  = 21 * 1024
H1_ST  = 59 * 1024
AR_A, AR_B2 = 0, 8 * XS_ST
AR_C   = AR_B2 + 163840
AR_B1  = 8 * H1_ST
AR_SL  = AR_B1 + 8 * XS_ST
AR_SZ  = 16 * AR_SL
WS_END = ARENA + AR_SZ
for _n in [W1P, WOP, W1F, W2P, KVP, STATS, ARENA]:
    assert _n % 1024 == 0, hex(_n)
if __name__ == "__main__":
    for k, val in list(globals().items()):
        if k.isupper(): print(k, hex(val), val)
```

```python
import sys
from layout import *
import k0 as K0
def header(launches):
    H = open("adaLN_cond__linear_kernel_hedgehog__dense_activation_squared_relu__prompt.s.ref").read().split("\n")
    out = []
    for line in H:
        if line.startswith("; @launch"): break
        if line.startswith(";"): out.append(line)
    for (k, g, b, l) in launches:
        out.append(f"; @launch kernel={k} grid=({g},1,1) block=({b},1,1) lds={l}")
    return "\n".join(out)
def build(which, path):
    parts = []; descs = []; launches = []
    if "0" in which:
        t, d = K0.k0(); parts.append(t); descs.append(d); launches.append(("prep_kernel", K0.K0_WGS, 256, K0.K0_LDS))
    if "1" in which:
        import k1 as K1
        t, d = K1.k1(); parts.append(t); descs.append(d); launches.append(("qkv_kernel", 256, 256, K1.K1_LDS))
    if "2" in which:
        import k2 as K2
        t, d = K2.k2(); parts.append(t); descs.append(d); launches.append(("tail_kernel", 256, 256, K2.K2_LDS))
    txt = header(launches) + '\n.amdgcn_target "amdgcn-amd-amdhsa--gfx950"\n.text\n' + "\n".join(parts) + '\nL_code_end:\n.section .rodata,"a"\n' + "\n".join(descs)
    open(path, "w").write(txt)
    return launches
if __name__ == "__main__":
    print(build(sys.argv[1], sys.argv[2]))
```
